```python
import torch

def _softmax(x, axis=-1):
    return torch.softmax(x, dim=axis)
def _gelu(x):
    return torch.nn.functional.gelu(x, approximate="tanh")
def _silu(x):
    return torch.nn.functional.silu(x)
def _sigmoid(x):
    return torch.sigmoid(x)
def _layernorm(x, axis=-1, eps=1e-5):
    m = x.mean(dim=axis, keepdim=True)
    v = x.var(dim=axis, keepdim=True, unbiased=False)
    return (x - m) / torch.sqrt(v + eps)
def _scatter_add(tgt, idx, src, axis=0):
    return tgt.clone().index_add_(axis, idx, src)
def _segment_sum(src, seg, n):
    out = torch.zeros((n,) + src.shape[1:], dtype=src.dtype)
    return out.index_add_(0, seg, src)
def _pad(x, pw):
    flat = tuple(v for pair in reversed(pw) for v in pair)
    return torch.nn.functional.pad(x, flat)

kernel_name = 'concat_heads__ssm_conv_s4d__spectral_gfnet__prompt'

def setup_inputs():

    _w = (lambda a: (lambda t: t.to(torch.bfloat16) if t.is_floating_point() else t)(torch.as_tensor(a)))
    def _A_setup():
        Bsz, L, D, N = 1, 2048, 576, 128
        return {
            "u": _w((lambda *s: torch.randn(*s, dtype=torch.bfloat16) * 0.05)(Bsz, L, D)),
            "log_A_real": _w((lambda *s: torch.randn(*s, dtype=torch.bfloat16) * 6.4)(D, N) * 0.5),
            "A_imag": _w((lambda *s: torch.randn(*s, dtype=torch.bfloat16) * 0.05)(D, N) * 3.14),
            "C_real": _w((lambda *s: torch.randn(*s, dtype=torch.bfloat16) * 0.05)(D, N) / N ** 0.5),
            "C_imag": _w((lambda *s: torch.randn(*s, dtype=torch.bfloat16) * 0.05)(D, N) / N ** 0.5),
            "log_dt": _w((lambda *s: torch.randn(*s, dtype=torch.bfloat16) * 0.05)(D) * 0.5 - 4.0),
            "D_skip": _w((lambda *s: torch.randn(*s, dtype=torch.bfloat16) * 0.05)(D)),
        }
    _A_in = _A_setup()

    def _B_setup():
        B, S, D = 1, 2048, 576
        Df = D // 2 + 1
        return {
            "x": _w((lambda *s: torch.randn(*s, dtype=torch.bfloat16) * 0.05)(B, S, D)),
            "w_r": _w((lambda *s: torch.randn(*s, dtype=torch.bfloat16) * 0.8)(S, Df) * 0.02),
            "w_i": _w((lambda *s: torch.randn(*s, dtype=torch.bfloat16) * 0.8)(S, Df) * 0.02),
        }
    _B_in = _B_setup()

    return {
        "A_u": _A_in["u"],
        "A_log_A_real": _A_in["log_A_real"],
        "A_A_imag": _A_in["A_imag"],
        "A_C_real": _A_in["C_real"],
        "A_C_imag": _A_in["C_imag"],
        "A_log_dt": _A_in["log_dt"],
        "A_D_skip": _A_in["D_skip"],
        "B_x": _B_in["x"],
        "B_w_r": _B_in["w_r"],
        "B_w_i": _B_in["w_i"],
    }

def reference(A_u, A_log_A_real, A_A_imag, A_C_real, A_C_imag, A_log_dt, A_D_skip, B_x, B_w_r, B_w_i):
    def _A_ref(u, log_A_real, A_imag, C_real, C_imag, log_dt, D_skip):
        L = u.shape[1]
        dt = torch.exp(log_dt)
        A = -torch.exp(log_A_real) + 1j * A_imag
        C = (C_real + 1j * C_imag) * dt[:, None]
        pos = (lambda x, dt: x.to(dt))(torch.arange(L), log_dt.dtype)
        P = torch.exp((A * dt[:, None])[:, :, None] * pos[None, None, :])
        K = 2.0 * torch.einsum("dn,dnl->dl", C, P).real
        L2 = 2 * L
        u_t = (lambda x, *d: x.permute(*d))(u, 0, 2, 1)
        Kf = (lambda x, *a, **k: torch.fft.rfft(x.float(), *a, **k))(K, L2)
        Uf = (lambda x, *a, **k: torch.fft.rfft(x.float(), *a, **k))(u_t, L2)
        y = (lambda x, *a, **k: torch.fft.irfft(x, *a, **k).to(torch.bfloat16))(Uf * Kf[None, :, :], L2)[:, :, :L]
        y = (lambda x, *d: x.permute(*d))(y, 0, 2, 1)
        return y + u * D_skip[None, None, :]

    def _B_ref(x, w_r, w_i):
        B, S, D = x.shape
        X = (lambda x, axes=(-2,-1): torch.fft.rfft2(x.float(), dim=axes))(x, axes=(-2, -1))
        W = w_r + 1j * w_i
        X = X * W
        y = (lambda x, s, axes=(-2,-1): torch.fft.irfft2(x, s=s, dim=axes).to(torch.bfloat16))(X, (S, D), axes=(-2, -1))
        return y

    a = _A_ref(A_u, A_log_A_real, A_A_imag, A_C_real, A_C_imag, A_log_dt, A_D_skip)
    b = _B_ref(B_x, B_w_r, B_w_i)
    return torch.concatenate([a, b], axis=-1)
```

```python
import re

TRANS = ("v_exp_f32","v_log_f32","v_rcp_f32","v_rsq_f32","v_sqrt_f32","v_sin_f32","v_cos_f32")

def regs_of(tok):
    tok = tok.strip()
    tok = tok.lstrip('-')
    m = re.match(r'^(?:abs\(|\|)?([vsa])(\d+)\)?\|?$', tok)
    if m: return {(m.group(1), int(m.group(2)))}
    m = re.match(r'^([vsa])\[(\d+):(\d+)\]$', tok)
    if m: return {(m.group(1), i) for i in range(int(m.group(2)), int(m.group(3))+1)}
    if tok in ('vcc','vcc_lo','vcc_hi'): return {('x','vcc')}
    if tok in ('exec','exec_lo','exec_hi'): return {('x','exec')}
    if tok == 'm0': return {('x','m0')}
    return set()

class Ins:
    def __init__(self, text):
        self.text = text
        t = text.split(';')[0].strip()
        self.label = None; self.op = None
        self.w = set(); self.r = set(); self.kind = None
        self.A = self.B = self.C = set(); self.passes = 0
        self.target = None; self.storedata = set(); self.dpp = False; self.states = 1
        if not t: self.kind = 'none'; self.states = 0; return
        if t.endswith(':'): self.label = t[:-1]; self.kind = 'label'; self.states = 0; return
        if t.startswith('.'): self.kind = 'dir'; self.states = 0; return
        parts = t.split(None, 1)
        op = parts[0]; self.op = op
        rest = parts[1] if len(parts) > 1 else ''
        ops = [o.strip() for o in rest.split(',')] if rest else []
        mods = ''
        if ops:
            ops = []; cur = ''; depth = 0
            for ch in rest:
                if ch == '[': depth += 1
                if ch == ']': depth -= 1
                if ch == ',' and depth == 0: ops.append(cur.strip()); cur = ''
                else: cur += ch
            ops.append(cur.strip())
            last = ops[-1].split(None, 1)
            ops[-1] = last[0]; mods = last[1] if len(last) > 1 else ''
        self.mods = mods
        R = [regs_of(o) for o in ops]
        base = op.replace('_e32','').replace('_e64','').replace('_dpp','').replace('_sdwa','')
        self.base = base
        if op == 's_nop':
            self.kind = 'salu'; self.states = int(ops[0], 0) + 1
        elif op.startswith('v_mfma'):
            self.kind = 'mfma'; self.w = R[0]; self.A = R[1]; self.B = R[2]; self.C = R[3]
            self.r = R[1] | R[2] | R[3]
            self.passes = 8 if '32x32' in op else 4
        elif op.startswith('v_'):
            self.kind = 'trans' if base in TRANS else 'valu'
            if base.startswith('v_cmpx'):
                self.w = R[0] | {('x','exec')}; self.r = set().union(*R[1:])
            elif base in ('v_add_co_u32','v_sub_co_u32','v_addc_co_u32','v_subb_co_u32','v_mad_u64_u32'):
                self.w = R[0] | R[1]; self.r = set().union(*R[2:])
            elif base.startswith('v_permlane') and 'swap' in base:
                self.w = R[0] | R[1]; self.r = R[0] | R[1]
            elif base == 'v_nop':
                pass
            else:
                self.w = R[0]; self.r = set().union(*R[1:]) if len(R) > 1 else set()
                if base in ('v_fmac_f32','v_pk_fmac_f16','v_writelane_b32','v_dot2c_f32_bf16'): self.r |= R[0]
                if base == 'v_cndmask_b32' and len(ops) == 3: self.r |= {('x','vcc')}
            if 'row_' in mods or 'quad_perm' in mods or 'wave_' in mods or '_dpp' in op:
                self.dpp = True; self.r |= R[0]
            self.opsel_dst = ('dst_sel' in mods and 'dst_sel:DWORD' not in mods)
        elif op.startswith('ds_'):
            self.kind = 'ds'
            if op.startswith('ds_read') or op.startswith('ds_bpermute') or op.startswith('ds_permute') or op.startswith('ds_swizzle') or '_rtn' in op:
                self.w = R[0]; self.r = set().union(*R[1:]) if len(R) > 1 else set()
                if 'd16' in op: self.r |= R[0]
            else:
                self.r = set().union(*R)
            if 'addtid' in op: self.r |= {('x','m0')}
        elif op.startswith('buffer_') or op.startswith('global_'):
            self.kind = 'vmem'
            islds = bool(re.search(r'\blds\b', mods)) or '_lds_' in op
            if 'load' in op and not islds:
                self.w = R[0]; self.r = set().union(*R[1:])
            else:
                self.r = set().union(*R)
                if islds: self.r |= {('x','m0')}
                if 'store' in op and ('x3' in op or 'x4' in op):
                    self.storedata = R[0] if op.startswith('buffer_') else R[1]
            self.islds = islds
        elif op.startswith('s_'):
            self.kind = 'salu'
            if op.startswith('s_cbranch') or op == 's_branch':
                self.target = ops[0]
                if 'vcc' in op: self.r = {('x','vcc')}
            elif op.startswith('s_cmp') or op.startswith('s_bitcmp') or op in ('s_waitcnt','s_barrier','s_endpgm','s_setprio','s_sleep'):
                self.r = set().union(*R) if R else set()
            else:
                self.w = R[0] if R else set(); self.r = set().union(*R[1:]) if len(R) > 1 else set()
                if 'saveexec' in op: self.w = self.w | {('x','exec')}
        else:
            raise ValueError("unknown instr: " + text)

def need(p, c):
    n = 0
    isv = lambda s: {x for x in s if x[0] in 'va'}
    iss = lambda s: {x for x in s if x[0] == 's' or x == ('x','vcc')}
    pv = p.kind in ('valu','trans'); cv = c.kind in ('valu','trans')
    if pv:
        if c.kind == 'mfma' and isv(p.w) & c.r: n = max(n, 2)
        if c.kind == 'mfma' and ('x','exec') in p.w: n = max(n, 4)
        if p.kind == 'trans' and cv and c.kind != 'trans' and p.w & c.r: n = max(n, 1)
        if p.kind == 'trans' and c.kind in ('ds','vmem') and p.w & c.r: n = max(n, 1)
        if c.kind == 'vmem' and iss(p.w) & c.r: n = max(n, 5)
        if cv and iss(p.w) & c.r: n = max(n, 4 if c.base in ('v_readlane_b32','v_writelane_b32') else 2)
        if cv and c.base in ('v_readlane_b32','v_readfirstlane_b32') and isv(p.w) & c.r: n = max(n, 1)
        if cv and c.dpp and isv(p.w) & c.r: n = max(n, 2)
        if cv and c.dpp and ('x','exec') in p.w: n = max(n, 5)
        if cv and c.base.startswith('v_permlane') and isv(p.w) & c.r: n = max(n, 2)
        if cv and ('x','exec') in p.w and c.base in ('v_readlane_b32','v_readfirstlane_b32','v_writelane_b32'): n = max(n, 4)
        if cv and getattr(p,'opsel_dst',False) and p.w & (c.r | c.w): n = max(n, 1)
        if c.kind == 'salu' and iss(p.w) & c.r: n = max(n, 1 if not c.target else 5)
    if p.kind == 'mfma':
        P = p.passes
        if c.kind == 'mfma':
            if p.w & (c.A | c.B): n = max(n, 8 if P == 4 else 12)
            if p.w & c.C:
                if not (p.w == c.C and p.passes == c.passes): n = max(n, 6 if P == 4 else 10)
            elif p.w & c.w: n = max(n, 8 if P == 4 else 12)
        elif c.kind in ('valu','trans','ds','vmem'):
            if p.w & (c.r | c.w): n = max(n, 8 if P == 4 else 12)
            if cv and p.C & c.w: n = max(n, 3 if P == 4 else 7)
    if p.kind == 'vmem' and p.storedata and c.kind in ('valu','trans','mfma','ds','vmem') and p.storedata & c.w: n = max(n, 2)
    if p.kind == 'salu' and ('x','m0') in p.w and c.kind in ('ds','vmem') and ('x','m0') in c.r: n = max(n, 1)
    return n

MAXW = 13

class Asm:
    def __init__(self): self.lines = []
    def __call__(self, s):
        for l in s.split('\n'):
            l = l.strip()
            if l: self.lines.append(l)
    def finalize(self):
        ins = [Ins(l) for l in self.lines]
        total = 0
        while True:
            labels = {x.label: i for i, x in enumerate(ins) if x.label}
            srcs = {}
            for i, x in enumerate(ins):
                if x.target in labels: srcs.setdefault(x.target, []).append(x)
            out = []; pos = {}; inserted = 0
            cur = {id(x): i for i, x in enumerate(ins)}
            def preds(lst, idx, j):
                x = lst[j]; res = []
                if j > 0 and lst[j-1].op not in ('s_branch','s_endpgm'): res.append(j-1)
                if x.label:
                    for b in srcs.get(x.label, []):
                        if id(b) in idx: res.append(idx[id(b)])
                return res
            def lack_of(lst, idx, i):
                c = lst[i]; lack = 0
                stack = [(p, 0) for p in preds(lst, idx, i)]; seen = {}
                while stack:
                    j, d = stack.pop()
                    if d >= MAXW or seen.get(j, 99) <= d: continue
                    seen[j] = d
                    p = lst[j]
                    if p.states: lack = max(lack, need(p, c) - d)
                    for q in preds(lst, idx, j): stack.append((q, d + p.states))
                return lack
            for x in ins:
                out.append(x); pos[id(x)] = len(out) - 1
                if x.states == 0 or x.op == 's_nop': continue
                l = lack_of(out, pos, len(out) - 1)
                if l > 0:
                    out.insert(len(out) - 1, Ins("s_nop %d" % (l - 1))); pos[id(x)] = len(out) - 1
                    inserted += 1
            ins = out
            cur = {id(x): i for i, x in enumerate(ins)}
            for i, x in enumerate(ins):
                if x.states == 0 or x.op == 's_nop': continue
                l = lack_of(ins, cur, i)
                if l > 0:
                    ins.insert(i, Ins("s_nop %d" % (l - 1))); inserted += 1
                    break
            total += inserted
            if not inserted: break
        self.nops = total
        return '\n'.join(x.text if x.kind == 'label' else '    ' + x.text for x in ins) + '\n'
```

```python
from roleB import f2u, vr, mf16
import math
SSTR = 10512; S3 = 0; S5 = 3200; S7 = 6304; S9 = 8432
CH0 = 63072; CSTR = 10592; KC = 0; KCS = 1216; K4 = 4864; K8 = 5376; UP = 6016; U0 = 6496
PART = CH0 + 6*CSTR; PSTR = 3088
YST = PART; YSTR = 4112
ROW = 288; SCR = 16*ROW
LOG2E = 1.4426950408889634

class Q:
    def __init__(s, a): s.a = a; s.n = 0; s.done = 0; s.w = {}
    def issue(s, text, regs=()):
        s.a(text); s.n += 1
        for r in regs: s.w[r] = s.n
    def need(s, regs):
        k = max([s.w.get(r, 0) for r in regs] + [0])
        if k > s.done:
            N = min(14, s.n - k); s.a("s_waitcnt lgkmcnt(%d)" % N); s.done = s.n - N
    def drain(s):
        s.a("s_waitcnt lgkmcnt(0)"); s.done = s.n

def rr(a, n): return list(range(a, a+n))

def gen_A(a, TS, prefetch, TAB):
    UD = 16
    BM = 32
    a("""
L_A:
    s_load_dwordx4 s[12:15], s[0:1], 8
    s_load_dwordx4 s[32:35], s[0:1], 24
    s_load_dwordx4 s[40:43], s[0:1], 40
    s_load_dwordx2 s[8:9], s[0:1], 0
    s_load_dwordx2 s[20:21], s[0:1], 80
    s_load_dwordx2 s[24:25], s[0:1], 96
    """)
    prefetch(a, "A")
    a("v_lshlrev_b32 v4, 4, v0\nglobal_load_dword v167, v4, s[4:5]")
    a("""
    s_sub_u32 s3, s2, 128
    s_and_b32 s30, s3, 7
    s_mul_i32 s30, s30, 12
    s_lshr_b32 s3, s3, 3
    s_add_u32 s30, s30, s3
    s_mul_i32 s3, s3, 43
    s_lshr_b32 s48, s31, 1
    s_and_b32 s49, s31, 1
    s_mul_i32 s50, s30, 6
    s_add_u32 s50, s50, s48
    s_lshl_b32 s51, s50, 8
    s_lshl_b32 s4, s49, 7
    s_add_u32 s51, s51, s4
    s_lshl_b32 s50, s50, 1
    s_mul_i32 s54, s30, 12
    v_lshlrev_b32 v4, 1, v1
    v_mov_b32 v5, 0
    v_add_u32 v14, s3, v0
    v_and_b32 v14, 511, v14
    v_mul_u32_u24 v6, 4608, v14
    v_mov_b32 v8, 0
    v_mov_b32 v9, 0
    v_mov_b32 v10, 0
    v_mov_b32 v11, 0
    v_mov_b32 v12, 0
    v_mov_b32 v13, 0
    s_mov_b32 s10, 2359296
    s_mov_b32 s11, 0x20000
    s_mov_b32 s18, 147456
    s_mov_b32 s19, 0x20000
    s_mov_b32 s38, 147456
    s_mov_b32 s39, 0x20000
    s_mov_b32 s46, 1152
    s_mov_b32 s47, 0x20000
    s_waitcnt lgkmcnt(0)
    s_mov_b32 s16, s14
    s_mov_b32 s17, s15
    s_mov_b32 s14, 147456
    s_mov_b32 s15, 0x20000
    s_mov_b32 s36, s34
    s_mov_b32 s37, s35
    s_mov_b32 s34, 147456
    s_mov_b32 s35, 0x20000
    s_mov_b32 s44, s42
    s_mov_b32 s45, s43
    s_mov_b32 s42, 1152
    s_mov_b32 s43, 0x20000
    buffer_load_short_d16_hi v12, v5, s[40:43], s50 offen
    buffer_load_short_d16_hi v8, v4, s[12:15], s51 offen
    buffer_load_short_d16_hi v9, v4, s[16:19], s51 offen
    buffer_load_short_d16_hi v10, v4, s[32:35], s51 offen
    buffer_load_short_d16_hi v11, v4, s[36:39], s51 offen
    buffer_load_short_d16_hi v13, v5, s[44:47], s50 offen
    s_barrier
    s_cmp_ge_u32 s31, 8
    s_cbranch_scc1 L_A_nog
    """)
    for e in range(4): a("buffer_load_dwordx3 %s, v6, s[8:11], s54 offen offset:%d" % (vr(UD+4*e,3), 1152*e))
    a("""
L_A_nog:
    s_setprio 0
    s_mov_b32 s22, 4718592
    s_mov_b32 s23, 0x20000
    s_mov_b32 s26, 0x1000000
    s_mov_b32 s27, 0x20000
    s_mov_b32 s52, 0x05040100
    s_mov_b32 s53, 0x07060302
    s_mul_i32 s55, s48, %d
    s_add_u32 s55, s55, %d
    s_mul_i32 s56, s48, %d
    s_mul_i32 s57, s31, %d
    s_add_u32 s57, s57, %d
    s_mul_i32 s58, s31, %d
    s_mov_b32 m0, s58
    """ % (CSTR, CH0, SSTR, PSTR, PART, SCR))
    TS(a, 1)
    a("""
    v_mov_b32 v48, 0
    v_mov_b32 v49, 0
    v_mov_b32 v50, 0
    v_mov_b32 v51, 0
    s_lshl_b32 s3, s49, 10
    s_add_u32 s3, s3, s55
    v_add_u32 v4, s3, v7
    s_add_u32 s3, s55, %d
    v_min_u32 v5, s3, v4
    ds_write_b128 v4, v[48:51]
    ds_write_b128 v4, v[48:51] offset:2048
    ds_write_b128 v4, v[48:51] offset:4096
    ds_write_b128 v5, v[48:51] offset:6144
    v_mov_b32 v5, s57
    ds_write_b128 v5, v[48:51]
    """ % (U0 - 16 - 6144))
    a("""
    v_lshlrev_b32 v4, 3, v3
    v_add_u32 v4, v4, v2
    v_sub_u32 v4, 12, v4
    v_cvt_f32_i32 v15, v4
    v_mov_b32 v48, v15
    """)
    for j in range(1, 8): a("v_add_f32 v%d, 1.0, v%d" % (48+j, 47+j))
    for w in range(4):
        a("s_mov_b32 s3, %s" % f2u(w + 2.0))
        for j in range(8): a("v_sub_f32_e64 v%d, s3, |v%d| clamp" % (56+j, 48+j))
        for i in range(4): a("v_cvt_pk_bf16_f32 v%d, v%d, v%d" % (BM+4*w+i, 56+2*i, 57+2*i))
    FA = 48; FA1 = 49; PA = 50
    a("""
    v_lshl_add_u32 v4, v3, 4, s58
    v_mov_b32 v5, %d
    v_mad_u32_u24 v48, v2, v5, v4
    v_bfe_u32 v6, v2, 1, 1
    v_add_u32 v6, v6, v2
    v_lshrrev_b32 v6, 1, v6
    v_mad_u32_u24 v49, v6, v5, v4
    v_lshl_add_u32 v4, v3, 4, s57
    v_lshl_add_u32 v50, v2, 6, v4
    s_cmp_ge_u32 s31, 8
    s_cbranch_scc1 L_A_pw0
    s_waitcnt vmcnt(4)
    s_branch L_A_pw1
L_A_pw0:
    s_waitcnt vmcnt(0)
L_A_pw1:
    """ % ROW)
    TS(a, 2)
    P = lambda e: 52 + 2*(e-1)
    W256 = 84; W32 = 86; VA = 88; VB = 90; T = [92, 94, 96, 98]; CV = [100, 101, 102, 103]
    BS = {512: 104, 768: 106, 1024: 108, 1280: 110, 1536: 112, 1792: 114}
    VF = 116; UF = 132; D = [148, 152, 156]
    a("""
    s_mov_b32 s3, %s
    s_mov_b32 s4, 0xffff0000
    v_mul_f32 v12, s3, v12
    v_mul_f32 v8, s3, v8
    v_exp_f32 v12, v12
    v_exp_f32 v8, v8
    v_cvt_pk_bf16_f32 v12, v12, v12
    v_cvt_pk_bf16_f32 v8, v8, v8
    v_and_b32 v12, s4, v12
    v_and_b32 v8, s4, v8
    v_mul_f32 v8, v8, v12
    v_mul_f32 v9, v9, v12
    v_add_f32 v12, v12, v12
    v_mul_f32 v8, %s, v8
    v_mul_f32 v9, 0.15915494, v9
    v_mul_f32 v88, v10, v12
    v_mul_f32 v89, v11, v12
    """ % (f2u(LOG2E), f2u(-LOG2E)))
    dirs = ((1, P(1)), (16, P(16)), (256, W256))
    for i, (p, d) in enumerate(dirs):
        if p == 1: a("v_mov_b32 v%d, v8\nv_mov_b32 v%d, v9" % (92+2*i, 93+2*i))
        else: a("v_mul_f32 v%d, %s, v8\nv_mul_f32 v%d, %s, v9" % (92+2*i, f2u(p), 93+2*i, f2u(p)))
    for i in range(3): a("v_fract_f32 v%d, v%d" % (93+2*i, 93+2*i))
    for i, (p, d) in enumerate(dirs):
        a("v_exp_f32 v%d, v%d\nv_cos_f32 v%d, v%d\nv_sin_f32 v%d, v%d" % (92+2*i, 92+2*i, d, 93+2*i, d+1, 93+2*i))
    for i, (p, d) in enumerate(dirs):
        a("v_pk_mul_f32 %s, %s, %s op_sel_hi:[1,0]" % (vr(d,2), vr(d,2), vr(92+2*i,2)))
    q = Q(a)
    def cmuls(lst):
        for (d, x, y) in lst: a("v_pk_mul_f32 %s, %s, %s op_sel_hi:[1,0]" % (vr(d,2), vr(x,2), vr(y,2)))
        for (d, x, y) in lst: a("v_pk_fma_f32 %s, %s, %s, %s op_sel:[1,1,0] op_sel_hi:[0,1,1] neg_lo:[1,0,0]" % (vr(d,2), vr(x,2), vr(y,2), vr(d,2)))
    cvi = [0]
    def put(src, row, neg=False):
        c = CV[cvi[0] % 4]; cvi[0] += 1
        a("v_cvt_pk_bf16_f32 v%d, v%d, %sv%d" % (c, src, "-" if neg else "", src+1))
        q.issue("ds_write_addtid_b32 v%d offset:%d" % (c, row*ROW))
    def frags(dst, adr):
        for ks in range(4): q.issue("ds_read_b128 %s, v%d offset:%d" % (vr(dst+4*ks,4), adr, 64*ks), rr(dst+4*ks,4))
    def mm(d):
        for ks in range(4):
            q.need(rr(UF+4*ks,4) + rr(VF+4*ks,4)); mf16(a, d, UF+4*ks, VF+4*ks, ks == 0)
    pw = [[(P(2),P(1),P(1))], [(P(3),P(2),P(1)), (P(4),P(2),P(2))], [(P(5),P(4),P(1)), (P(6),P(4),P(2))], [(P(7),P(4),P(3)), (P(8),P(4),P(4))],
          [(P(9),P(8),P(1)), (P(10),P(8),P(2))], [(P(11),P(8),P(3)), (P(12),P(8),P(4))], [(P(13),P(8),P(5)), (P(14),P(8),P(6))], [(P(15),P(8),P(7))]]
    cmuls([(W32, P(16), P(16)), (VB, VA, P(16))] + pw[0])
    cur = [VA, VB]; alt = [T[0], T[1]]
    for s in range(8):
        if s < 7: cmuls([(alt[0], cur[0], W32), (alt[1], cur[1], W32)] + pw[s+1])
        put(cur[0], 2*s, True); put(cur[1], 2*s+1, True)
        cur, alt = alt, cur
    frags(VF, FA)
    a("v_mov_b32 v%d, 0x3f80" % T[2]); q.issue("ds_write_addtid_b32 v%d" % T[2])
    bases = [[(BS[512], W256, W256)], [(BS[768], BS[512], W256), (BS[1024], BS[512], BS[512])],
             [(BS[1280], BS[1024], W256), (BS[1536], BS[1024], BS[512]), (BS[1792], BS[1024], BS[768])]]
    for e in range(1, 16):
        if e in (1, 5, 9): cmuls(bases[e//4])
        put(P(e), e)
    frags(UF, FA)
    put(W256, 0)
    for s in range(2):
        cmuls([(T[i], W256, P(8*s+2*i+2)) for i in range(4)])
        for i in range(4): put(T[i], 4*s+i+1)
    mm(D[0])
    frags(UF, FA1)
    rows = [(512,4),(512,8),(512,12),(512,16),(768,4),(768,8),(768,12),(768,16),(1024,8),(1024,16),(1280,8),(1280,16),(1536,8),(1536,16),(1792,8),(1792,16)]
    for s in range(4):
        cmuls([(T[i], BS[rows[4*s+i][0]], P(rows[4*s+i][1])) for i in range(4)])
        for i in range(4): put(T[i], 4*s+i)
        if s == 1: mm(D[1])
    frags(UF, FA)
    q.issue("ds_write_b128 v%d, %s offset:16" % (PA, vr(D[0],4)))
    q.issue("ds_write_b128 v%d, %s offset:1040" % (PA, vr(D[1],4)))
    mm(D[2])
    TS(a, 3)
    a("""
    s_cmp_ge_u32 s31, 8
    s_cbranch_scc1 L_A_nou
    v_lshlrev_b32 v4, 3, v14
    v_add_u32 v4, %d, v4
    s_waitcnt vmcnt(0)
    """ % (CH0 + U0))
    for c in range(6):
        sel = "s53" if c & 1 else "s52"; o = c >> 1
        a("v_perm_b32 v%d, v%d, v%d, %s" % (52+2*c, UD+4+o, UD+o, sel))
        a("v_perm_b32 v%d, v%d, v%d, %s" % (53+2*c, UD+12+o, UD+8+o, sel))
        a("ds_write_b64 v4, %s offset:%d" % (vr(52+2*c,2), c*CSTR))
    a("L_A_nou:")
    a("ds_write_b128 v%d, %s offset:2064" % (PA, vr(D[2],4)))
    BA = 16
    a("""
    s_and_b32 s3, s31, 14
    s_mul_i32 s3, s3, %d
    s_add_u32 s3, s3, %d
    v_add_u32 v4, s3, v7
    s_lshl_b32 s4, s49, 10
    v_add_u32 v5, s4, v4
    s_lshl_b32 s4, s49, 9
    s_sub_u32 s4, s55, s4
    s_add_u32 s4, s4, 1068
    v_lshlrev_b32 v6, 3, v1
    v_sub_u32 v6, s4, v6
    v_lshlrev_b32 v8, 5, v2
    v_lshlrev_b32 v9, 4, v3
    v_sub_u32 v16, v8, v9
    s_add_u32 s4, s55, %d
    v_add_u32 v16, s4, v16
    s_mul_i32 s4, s49, 1536
    v_add_u32 v10, s4, v16
    v_lshl_add_u32 v8, v3, 3, v8
    s_add_u32 s4, s4, s56
    v_add_u32 v11, s4, v8
    s_lshl_b32 s4, s49, 10
    v_add_u32 v9, s4, v16
    s_add_u32 s4, s4, s56
    v_add_u32 v8, s4, v8
    s_waitcnt lgkmcnt(0)
    """ % (PSTR, PART, U0 + 16 - 448))
    TS(a, 4)
    a("s_barrier")
    TS(a, 5)
    q = Q(a)
    q.issue("ds_read_b128 v[52:55], v5 offset:16", rr(52,4)); q.issue("ds_read_b128 v[56:59], v5 offset:%d" % (PSTR+16), rr(56,4))
    q.issue("ds_read_b32 v60, v5 offset:12", [60]); q.issue("ds_read_b32 v61, v5 offset:%d" % (PSTR+12), [61])
    q.issue("ds_read_b128 v[68:71], v4 offset:2064", rr(68,4)); q.issue("ds_read_b128 v[72:75], v4 offset:%d" % (PSTR+2064), rr(72,4))
    for t in range(3): q.issue("ds_read_b128 %s, v10 offset:%d" % (vr(80+4*t,4), 448 + 512*t), rr(80+4*t,4))
    for t in range(2): q.issue("ds_read_b128 %s, v9 offset:%d" % (vr(92+4*t,4), 448 + 512*t), rr(92+4*t,4))
    q.need(rr(52,10))
    a("""
    v_pk_add_f32 v[52:53], v[52:53], v[56:57]
    v_pk_add_f32 v[54:55], v[54:55], v[58:59]
    v_add_f32 v60, v60, v61
    v_cvt_pk_bf16_f32 v62, v55, v54
    v_cvt_pk_bf16_f32 v63, v53, v52
    v_cvt_pk_bf16_f32 v64, v54, v53
    v_cvt_pk_bf16_f32 v65, v52, v60
    """)
    def kcw(off):
        q.issue("ds_write_b64 v6, v[62:63] offset:%d" % (off+4)); q.issue("ds_write_b64 v6, v[64:65] offset:%d" % (KCS+off+4))
        q.issue("ds_write_b32 v6, v62 offset:%d" % (2*KCS+off)); q.issue("ds_write_b32 v6, v63 offset:%d" % (2*KCS+off+4))
        q.issue("ds_write_b32 v6, v64 offset:%d" % (3*KCS+off)); q.issue("ds_write_b32 v6, v65 offset:%d" % (3*KCS+off+4))
    kcw(8)
    jobs = [(80+4*t, w, 11, (S3, S5)[w] + 24 + 512*t) for t in range(3) for w in (0, 1)] + [(92+4*t, w, 8, (S7, S9)[w-2] + 24 + 512*t) for t in range(2) for w in (2, 3)]
    for i, (bf_, w, adr, off) in enumerate(jobs):
        q.need(rr(bf_,4)); mf16(a, 100+4*i, BM+4*w, bf_)
    a("s_cmp_eq_u32 s49, 0\ns_cbranch_scc1 L_A_f0")
    n0 = q.n
    a("""
    s_mov_b32 exec_lo, 0
    s_mov_b32 exec_hi, 0x80000000
    v_cvt_pk_bf16_f32 v62, 0, v55
    v_cvt_pk_bf16_f32 v63, v55, v55
    v_mov_b32 v64, v63
    v_mov_b32 v65, v63
    """)
    kcw(0)
    a("s_mov_b32 exec_lo, 0x3f\ns_mov_b32 exec_hi, 0\nv_lshl_add_u32 v4, v1, 2, s56\nv_mov_b32 v62, 0")
    for o in (S3, S5, S7, S9): a("ds_write_b32 v4, v62 offset:%d" % o)
    a("""
    s_mov_b64 exec, -1
    s_branch L_A_f1
L_A_f0:
    v_pk_add_f32 v[68:69], v[68:69], v[72:73]
    v_pk_add_f32 v[70:71], v[70:71], v[74:75]
    v_lshrrev_b32 v4, 2, v1
    v_and_b32 v5, 1, v1
    v_lshlrev_b32 v5, 7, v5
    v_add_u32 v5, s55, v5
    v_lshl_add_u32 v62, v4, 3, v5
    v_lshl_add_u32 v63, v4, 2, v5
    v_cvt_pk_bf16_f32 v64, v68, v69
    v_cvt_pk_bf16_f32 v65, v70, v71
    s_mov_b32 exec_lo, 0x33333333
    s_mov_b32 exec_hi, 0x33333333
    ds_write_b64 v62, v[64:65] offset:%d
    s_mov_b32 exec_lo, 0xcccccccc
    s_mov_b32 exec_hi, 0xcccccccc
    ds_write_b32 v63, v64 offset:%d
    ds_write_b32 v63, v65 offset:%d
    ds_write_b32 v63, v64 offset:%d
    ds_write_b32 v63, v65 offset:%d
    s_mov_b64 exec, -1
L_A_f1:
    """ % (K4+120, K8+60, K8+124, K8+320+56, K8+320+120))
    for i, (bf_, w, adr, off) in enumerate(jobs):
        a("v_cvt_pk_bf16_f32 v%d, v%d, v%d" % (140+2*i, 100+4*i, 101+4*i)); a("v_cvt_pk_bf16_f32 v%d, v%d, v%d" % (141+2*i, 102+4*i, 103+4*i))
        a("ds_write_b64 v%d, %s offset:%d" % (adr, vr(140+2*i,2), off))
    KA = 17; K4A = 18; K8A = 19; D2A = 20; D3A = 21; UA = 22; YA = 23
    a("""
    v_sub_u32 v4, 39, v2
    v_and_b32 v5, 3, v4
    v_and_b32 v4, 60, v4
    v_lshlrev_b32 v4, 1, v4
    v_mul_u32_u24 v5, %d, v5
    v_lshlrev_b32 v6, 4, v3
    v_add3_u32 v17, v4, v5, s55
    v_sub_u32 v17, v17, v6
    v_lshlrev_b32 v4, 3, v2
    v_sub_u32 v4, v4, v6
    s_add_u32 s3, s55, %d
    v_add_u32 v18, s3, v4
    v_and_b32 v5, 1, v2
    v_mul_u32_u24 v5, 316, v5
    v_lshl_add_u32 v5, v2, 2, v5
    v_sub_u32 v5, v5, v6
    s_add_u32 s3, s55, %d
    v_add_u32 v19, s3, v5
    v_bfe_u32 v4, v1, 2, 2
    v_and_b32 v5, 3, v1
    v_lshlrev_b32 v6, 3, v3
    v_sub_u32 v6, v6, v4
    v_and_b32 v4, 1, v4
    v_add_u32 v8, v6, v5
    v_lshlrev_b32 v8, 3, v8
    v_mul_u32_u24 v9, %d, v4
    s_add_u32 s3, s56, %d
    v_add3_u32 v20, v8, v9, s3
    v_lshlrev_b32 v8, 4, v6
    v_lshl_add_u32 v8, v5, 3, v8
    v_mul_u32_u24 v9, %d, v4
    s_add_u32 s3, s56, %d
    v_add3_u32 v21, v8, v9, s3
    v_lshlrev_b32 v4, 5, v2
    v_lshl_add_u32 v4, v3, 3, v4
    s_add_u32 s3, s55, %d
    v_add_u32 v22, s3, v4
    s_mul_i32 s3, s48, %d
    s_add_u32 s3, s3, %d
    v_add_u32 v23, s3, v4
    s_add_u32 s3, s55, %d
    v_mov_b32 v24, s3
    v_mov_b32 v25, 0
    s_waitcnt lgkmcnt(0)
    """ % (KCS, K4+48, K8+48, S5-S3, S3+24, S9-S7, S7+48, U0, YSTR, YST, K4+374))
    TS(a, 6)
    a("s_barrier")
    TS(a, 7)
    a("s_cmp_eq_u32 s49, 0\ns_cbranch_scc0 L_A_Y")
    KF = 28; G2 = 96; G3 = 120; ACC = 136; SPF = 156
    RING = [4, 8, 160, 164]
    def conv(tiles, lab):
        q = Q(a)
        acc = {n: ACC + 4*i for i, n in enumerate(tiles)}
        started = set()
        def mm_(n, A, B):
            q.need(rr(A,4) + rr(B,4)); mf16(a, acc[n], A, B, n not in started); started.add(n)
        q.issue("ds_read_u16_d16_hi v25, v24", [25])
        for eta in range(3, 9):
            for z in range(2): q.issue("ds_read_b64 %s, v%d offset:%d" % (vr(G2+4*(eta-3)+2*z,2), K4A, 64*(eta-3)+8*z), rr(G2+4*(eta-3)+2*z,2))
        e3 = sorted({n-k for n in tiles for k in range(4) if 4 <= n-k <= 7})
        st = []
        for kap in range(12):
            use = [(n, G2+4*(2*n-kap-3)) for n in tiles if 3 <= 2*n-kap <= 8]
            if use: st.append(("d2", kap, use))
        for kap in range(4):
            use = [(n, G3+4*(n-kap-4)) for n in tiles if 4 <= n-kap <= 7]
            if use: st.append(("d3", kap, use))
        nst = len(st)
        taus = sorted({8*n-s for n in tiles for s in list(range(17)) + ([32] if n >= 4 else []) if 8*n-s >= -7})
        for tau in taus:
            use = [(n, KF+4*(8*n-tau)) for n in tiles if 0 <= 8*n-tau <= 16] + [(n, SPF) for n in tiles if n >= 4 and 8*n-tau == 32]
            st.append(("b", tau, use))
        extra = []
        for eta in e3:
            for z in range(2): extra.append(("ds_read_b64 %s, v%d offset:%d" % (vr(G3+4*(eta-4)+2*z,2), K8A, 64*(eta-4)+8*z), rr(G3+4*(eta-4)+2*z,2)))
        order = sorted(range(17), key=lambda s: min(i for i, x in enumerate(st) if any(f == KF+4*s for _, f in x[2])))
        for s in order:
            for z in range(2): extra.append(("ds_read_b64 %s, v%d offset:%d" % (vr(KF+4*s+2*z,2), KA, 64*(16-s)+8*z), rr(KF+4*s+2*z,2)))
        def load(i):
            kind, idx, _ = st[i]; r = RING[i % len(RING)]
            if kind == "d2":
                for z in range(2): q.issue("ds_read_b64_tr_b16 %s, v%d offset:%d" % (vr(r+2*z,2), D2A, 256*idx + 32*(1-z)), rr(r+2*z,2))
            elif kind == "d3":
                for z in range(2): q.issue("ds_read_b64_tr_b16 %s, v%d offset:%d" % (vr(r+2*z,2), D3A, 512*idx + 64*(1-z)), rr(r+2*z,2))
            else:
                q.issue("ds_read_b128 %s, v%d offset:%d" % (vr(r,4), BA, 64*(idx+7)), rr(r,4))
        PF = len(RING) - 1
        for i in range(PF): load(i)
        q.need([25])
        for j in range(8):
            a("v_add_f32 v26, %s, v15" % f2u(j - 0.5))
            a("v_sub_f32_e64 v%d, s59, |v26| clamp" % (26 + (j & 1)) if (j & 1) else "v_sub_f32_e64 v12, s59, |v26| clamp")
            if j & 1:
                a("v_mul_f32 v12, v25, v12\nv_mul_f32 v27, v25, v27\nv_cvt_pk_bf16_f32 v%d, v12, v27" % (SPF + j//2))
        a("v_mov_b32 v12, v13")
        per = -(-len(extra) // nst)
        def epilogue(n):
            y = acc[n]; t = G2 + 8*(n % 2)
            q.issue("ds_read_b64 %s, v%d offset:%d" % (vr(t,2), UA, 512*n), rr(t,2))
            q.need(rr(t,2))
            a("v_lshlrev_b32 v%d, 16, v%d\nv_and_b32 v%d, s4, v%d\nv_lshlrev_b32 v%d, 16, v%d\nv_and_b32 v%d, s4, v%d" % (t+2, t, t+3, t, t+4, t+1, t+5, t+1))
            a("v_pk_mul_f32 %s, %s, v[12:13]" % (vr(t+2,2), vr(t+2,2)))
            a("v_pk_mul_f32 %s, %s, v[12:13]" % (vr(t+4,2), vr(t+4,2)))
            a("v_cvt_pk_bf16_f32 v%d, v%d, v%d\nv_cvt_pk_bf16_f32 v%d, v%d, v%d" % (t, t+2, t+3, t+1, t+4, t+5))
            a("v_cvt_pk_bf16_f32 v%d, v%d, v%d\nv_cvt_pk_bf16_f32 v%d, v%d, v%d" % (t+6, y, y+1, t+7, y+2, y+3))
            a("v_lshlrev_b32 v%d, 16, v%d\nv_and_b32 v%d, s4, v%d\nv_lshlrev_b32 v%d, 16, v%d\nv_and_b32 v%d, s4, v%d" % (t+2, t, t+3, t, t+4, t+1, t+5, t+1))
            a("v_lshlrev_b32 v%d, 16, v%d\nv_and_b32 v%d, s4, v%d\nv_lshlrev_b32 v%d, 16, v%d\nv_and_b32 v%d, s4, v%d" % (y, t+6, y+1, t+6, y+2, t+7, y+3, t+7))
            a("v_pk_add_f32 %s, %s, %s\nv_pk_add_f32 %s, %s, %s" % (vr(y,2), vr(y,2), vr(t+2,2), vr(y+2,2), vr(y+2,2), vr(t+4,2)))
            a("v_cvt_pk_bf16_f32 v%d, v%d, v%d\nv_cvt_pk_bf16_f32 v%d, v%d, v%d" % (t, y, y+1, t+1, y+2, y+3))
            q.issue("ds_write_b64 v%d, %s offset:%d" % (YA, vr(t,2), 512*n))
        pend = []
        for i, (kind, idx, use) in enumerate(st):
            r = RING[i % len(RING)]
            for (n, f) in use:
                if kind == "b": mm_(n, f, r)
                else: mm_(n, r, f)
            if i + PF < len(st): load(i + PF)
            for _ in range(per):
                if extra: t_, r_ = extra.pop(0); q.issue(t_, r_)
            for n in list(pend):
                if idx >= 8*n + 2: epilogue(n); pend.remove(n)
            if kind == "b" and idx % 8 == 0 and idx//8 in tiles: pend.append(idx//8)
        for n in pend: epilogue(n)
        q.drain()
    a("s_mov_b32 s59, 0x3fc00000\ns_mov_b32 s4, 0xffff0000")
    conv([0,1,2,3,4], "X")
    a("s_branch L_A_out\nL_A_Y:\ns_mov_b32 s59, 0x3fc00000\ns_mov_b32 s4, 0xffff0000")
    conv([5,6,7], "Y")
    a("L_A_out:")
    TS(a, 8)
    a("""
    v_lshlrev_b32 v4, 3, v14
    v_add_u32 v4, %d, v4
    v_mul_u32_u24 v5, 9216, v14
    s_add_u32 s55, s54, 2304
    s_add_u32 s56, s54, 4608
    s_add_u32 s57, s54, 6912
    s_barrier
    s_cmp_ge_u32 s31, 8
    s_cbranch_scc1 L_end
    """ % YST)
    TS(a, 9)
    for c in range(6): a("ds_read_b64 %s, v4 offset:%d" % (vr(28+2*c,2), c*YSTR))
    a("s_waitcnt lgkmcnt(0)")
    for e in range(4):
        sel = "s53" if e & 1 else "s52"; o = e >> 1
        for i in range(3): a("v_perm_b32 v%d, v%d, v%d, %s" % (40+4*e+i, 28+4*i+2+o, 28+4*i+o, sel))
        a("buffer_store_dwordx3 %s, v5, s[20:23], s%d offen" % (vr(40+4*e,3), 54+e))
    TS(a, 10)
```

```python
import struct
def f2u(x): return "0x%08x" % struct.unpack("<I", struct.pack("<f", x))[0]
X_OFF = 0x400000; XSTRIDE = 24832; ZSTRIDE = 26624; BAD = 0x40000000
TL = 0; TROW = 1168; WL = 18688; XL = WL + 36864; XROW = 208; CL = XL + 26624
SPIN = 1 << 20
LDMOD = "sc1"; STMOD = "sc1"

def vr(a, n): return "v[%d:%d]" % (a, a + n - 1)

def chain(a, arg, step, n, emit):
    for i in range(n):
        emit(i)
        if i + 1 < n: a("v_add_f32 v%d, v%d, v%d" % (arg, arg, step))

def cmul_pk(a, re, im, tc, ts, n, t0, after=None):
    for p in range(0, n, 4):
        ps = [q for q in (p, p+2) if q < n]
        for q in ps: a("v_pk_mul_f32 %s, %s, %s" % (vr(t0+(q&2),2), vr(re+q,2), vr(ts+q,2)))
        for q in ps: a("v_pk_mul_f32 %s, %s, %s" % (vr(re+q,2), vr(re+q,2), vr(tc+q,2)))
        for q in ps: a("v_pk_fma_f32 %s, %s, %s, %s neg_lo:[1,0,0] neg_hi:[1,0,0]" % (vr(re+q,2), vr(im+q,2), vr(ts+q,2), vr(re+q,2)))
        for q in ps: a("v_pk_fma_f32 %s, %s, %s, %s" % (vr(im+q,2), vr(im+q,2), vr(tc+q,2), vr(t0+(q&2),2)))
        if after: after(p)

def mf32(a, d, A, B, first): a("v_mfma_f32_32x32x16_bf16 %s, %s, %s, %s" % (vr(d,16), vr(A,4), vr(B,4), "0" if first else vr(d,16)))
def mf16(a, d, A, B, first=True): a("v_mfma_f32_16x16x32_bf16 %s, %s, %s, %s" % (vr(d,4), vr(A,4), vr(B,4), "0" if first else vr(d,4)))

def gen_B(a, TS, prefetch, TAB):
    CS = 16; TC = 34; TSN = 46; PJ = 58; C1 = 60; C1P = 62
    F16 = 64; F8 = 72; T1C = 80; T1S = 84; T2C = 112; T2S = 116; WR = 96; F16B = 148
    PG = 88; PL = 91; OA = 94; WA = 156
    SP1 = 64
    XD = 112; OP = 120; DR = 132; DI = 148; TMP = 164
    a("""
L_B:
    s_load_dwordx2 s[8:9], s[0:1], 56
    s_load_dwordx2 s[24:25], s[0:1], 96
    s_load_dwordx2 s[12:13], s[0:1], 64
    s_load_dwordx2 s[16:17], s[0:1], 72
    s_load_dwordx2 s[20:21], s[0:1], 80
    """)
    prefetch(a, "B")
    a("""
    s_min_u32 s3, s31, 10
    s_lshl_b32 s3, s3, 10
    s_add_u32 s4, s3, %d
    s_mov_b32 m0, s4
    v_add_u32 v4, s3, v7
    s_and_b32 s30, s2, 7
    global_load_lds_dwordx4 v4, s[6:7]
    s_lshl_b32 s30, s30, 4
    s_lshr_b32 s3, s2, 3
    s_add_u32 s30, s30, s3
    s_min_u32 s3, s31, 9
    s_lshl_b32 s3, s3, 10
    s_add_u32 s4, s3, %d
    s_mov_b32 m0, s4
    s_and_b32 s4, s30, 0x71
    s_cmp_eq_u32 s4, 1
    s_mov_b32 s4, %d
    s_cselect_b32 s4, %d, s4
    s_add_u32 s3, s3, s4
    v_add_u32 v4, s3, v7
    s_cmp_eq_u32 s31, 0
    global_load_lds_dwordx4 v4, s[6:7]
    s_cbranch_scc0 L_B_x
    v_add_u32 v4, %d, v7
    v_add_u32 v5, %d, v7
    """ % (CL, CL + 11264, TAB['P2'], TAB['P2H'], TAB['SP1'] + 2048, TAB['TWS1'] + 2048))
    for i in range(6): a("global_load_dwordx4 %s, v4, s[6:7] offset:%d" % (vr(SP1+4*i,4), 1024*i - 2048))
    for i in range(6): a("global_load_dwordx4 %s, v5, s[6:7] offset:%d" % (vr(TC+4*i,4), 1024*i - 2048))
    a("""
L_B_x:
    s_mov_b32 s10, 2359296
    s_mov_b32 s11, 0x20000
    s_mul_i32 s44, s30, 1152
    s_lshl_b32 s3, s31, 7
    s_add_u32 s44, s44, s3
    s_add_u32 s45, s44, 147456
    s_add_u32 s46, s44, 294912
    s_add_u32 s47, s44, 442368
    v_mul_u32_u24 v4, 589824, v3
    v_lshl_add_u32 v4, v2, 3, v4
    s_mov_b32 s22, 4718592
    s_mov_b32 s23, 0x20000
    s_mov_b32 s26, 0x1000000
    s_mov_b32 s27, 0x20000
    s_cmp_ge_u32 s31, 9
    s_waitcnt lgkmcnt(0)
    s_cbranch_scc1 L_B_tlb
    buffer_load_dwordx2 v[112:113], v4, s[8:11], s44 offen
    buffer_load_dwordx2 v[114:115], v4, s[8:11], s45 offen
    buffer_load_dwordx2 v[116:117], v4, s[8:11], s46 offen
    buffer_load_dwordx2 v[118:119], v4, s[8:11], s47 offen
    s_load_dword s28, s[24:25], 12
    s_setprio 0
    """)
    TS(a, 1)
    a("""
    v_lshrrev_b32 v4, 1, v2
    v_and_b32 v5, 1, v2
    v_lshlrev_b32 v6, 9, v3
    v_add_u32 v6, s30, v6
    v_mul_u32_u24 v6, v6, v4
    v_lshl_add_u32 v6, v5, 9, v6
    v_lshlrev_b32 v8, 7, v4
    v_cmp_eq_u32 vcc, 1, v2
    v_mov_b32 v124, 0x400
    s_mov_b32 s3, %s
    v_cndmask_b32 v6, v6, 0, vcc
    v_cndmask_b32 v8, v8, v124, vcc
    v_cvt_f32_u32 v6, v6
    v_cvt_f32_u32 v8, v8
    v_mul_f32 v6, s3, v6
    v_mul_f32 v8, s3, v8
    """ % f2u(1.0/2048))
    chain(a, 6, 8, 4, lambda i: a("v_cos_f32 v%d, v6" % (120+i)))
    a("""
    s_mov_b32 s52, 0x05040100
    s_mov_b32 s53, 0x07060302
    v_cvt_pk_bf16_f32 v60, v120, v121
    v_cvt_pk_bf16_f32 v61, v122, v123
    v_mul_u32_u24 v4, %d, v2
    v_lshl_add_u32 v4, v3, 5, v4
    s_lshl_b32 s3, s31, 7
    v_add_u32 v4, s3, v4
    v_bfe_u32 v5, v1, 4, 1
    v_bfe_u32 v8, v1, 1, 1
    v_lshl_add_u32 v5, v5, 1, v8
    v_min_u32 v5, 2, v5
    v_lshlrev_b32 v5, 3, v5
    v_and_b32 v8, 1, v1
    v_mad_u32_u24 v5, v8, 24, v5
    v_bfe_u32 v8, v1, 2, 2
    v_mad_u32_u24 v5, v8, 48, v5
    v_lshrrev_b32 v9, 5, v1
    v_mul_u32_u24 v8, 576, v9
    s_mul_i32 s3, s31, %d
    v_add3_u32 v5, v5, v8, s3
    s_mul_i32 s44, s30, %d
    s_mul_i32 s3, s31, 3072
    s_add_u32 s44, s44, s3
    s_add_u32 s44, s44, %d
    s_cmp_eq_u32 s31, 0
    s_cselect_b32 s3, 0, 256
    s_add_u32 s44, s44, s3
    s_cmp_eq_u32 s31, 0
    s_movk_i32 s3, 768
    s_cselect_b32 s3, 832, s3
    s_add_u32 s45, s44, s3
    s_add_u32 s46, s45, s3
    s_add_u32 s47, s46, s3
    v_add_u32 v7, %d, v7
    s_cmp_eq_u32 s31, 0
    s_cbranch_scc1 L_B_b0a
    s_waitcnt vmcnt(4)
    s_branch L_B_b0
L_B_b0a:
    s_waitcnt vmcnt(16)
    s_branch L_B_b0
L_B_tlb:
    s_load_dword s28, s[24:25], 12
    s_setprio 0
    v_add_u32 v7, %d, v7
    s_waitcnt vmcnt(0)
    s_cmp_eq_u32 s31, 11
    s_cbranch_scc0 L_B_b0
    v_lshlrev_b32 v4, 17, v1
    v_mul_u32_u24 v5, 73728, v1
    buffer_load_dword v165, v4, s[24:27], 0 offen offset:64 sc1
    buffer_load_dword v166, v5, s[20:23], 0 offen sc1
L_B_b0:
    """ % (TROW, 2*TROW, XSTRIDE, X_OFF, CL, CL))
    TS(a, 14)
    a("""
    s_barrier
    v_mov_b32 v6, %d
    s_cmp_ge_u32 s31, 8
    s_cbranch_scc1 L_B_c24e
    """ % BAD)
    for i in range(4): a("ds_read_b128 %s, v7 offset:%d" % (vr(CS+4*i,4), 1024*i))
    a("""
    v_and_b32 v8, 31, v1
    s_cmp_eq_u32 s31, 0
    s_cbranch_scc1 L_B_sp1
    """)
    a("ds_read_b128 %s, v7 offset:%d" % (vr(CS+40,4), 10240))
    for i in range(4, 10): a("ds_read_b128 %s, v7 offset:%d" % (vr(CS+4*i,4), 1024*i))
    a("""
    v_cmp_gt_u32 vcc, 24, v8
    s_waitcnt lgkmcnt(6)
    v_mad_u32_u24 v8, v9, 24, v58
    s_branch L_B_sp1e
L_B_sp1:
    ds_read_b64 v[32:33], v7 offset:4096
    ds_read_b32 v58, v7 offset:10248
    v_cmp_gt_u32 vcc, 26, v8
    v_mad_u32_u24 v8, v9, 26, v8
L_B_sp1e:
    v_lshlrev_b32 v8, 4, v8
    v_cndmask_b32 v6, v6, v8, vcc
L_B_c24e:
    s_waitcnt lgkmcnt(0)
    s_add_u32 s28, s28, 1
    s_and_b32 s28, s28, 0xbfffbfff
    """)
    for q in range(4): a("v_mov_b32 v%d, s28" % (WR + 4*q + 3))
    TS(a, 2)
    a("""
    s_cmp_ge_u32 s31, 9
    s_cbranch_scc1 L_B_b1
    s_waitcnt vmcnt(0)
    """)
    TS(a, 3)
    for t in range(4):
        sel = "s53" if t & 1 else "s52"; o = t >> 1
        a("v_perm_b32 v%d, v%d, v%d, %s" % (OP+2*t, XD+2+o, XD+o, sel))
        a("v_perm_b32 v%d, v%d, v%d, %s" % (OP+2*t+1, XD+6+o, XD+4+o, sel))
    for t in range(4):
        a("v_mfma_f32_16x16x16_bf16 %s, %s, %s, 0" % (vr(DR+4*t,4), vr(OP+2*t,2), vr(C1,2)))
    for rho in range(4): a("v_cvt_pk_bf16_f32 v%d, v%d, v%d" % (DI+2*rho, DR+rho, DR+4+rho))
    for rho in range(4):
        a("v_cvt_pk_bf16_f32 v%d, v%d, v%d" % (DI+2*rho+1, DR+8+rho, DR+12+rho))
        if rho & 1: a("ds_write_b128 v4, %s offset:%d" % (vr(DI+4*(rho>>1),4), TL+16*(rho>>1)))
    a("""
    s_waitcnt lgkmcnt(0)
L_B_b1:
    s_barrier
    s_cmp_ge_u32 s31, 8
    s_cbranch_scc1 L_B_p1done
    """)
    for c in range(2):
        for al in range(3):
            a("ds_read_b64_tr_b16 %s, v5 offset:%d" % (vr(OP+6*c+2*al,2), TL + c*TROW + al*192))
    a("s_cmp_eq_u32 s31, 0\ns_cbranch_scc1 L_B_sp2")
    for ks in range(3):
        a("s_waitcnt lgkmcnt(%d)" % (4-2*ks))
        mf32(a, DR, OP+4*ks, CS+6+4*ks, ks == 0); mf32(a, DI, OP+4*ks, CS+4*ks, ks == 0)
    a("s_branch L_B_sp2e\nL_B_sp2:")
    for ks in range(3):
        a("s_waitcnt lgkmcnt(%d)" % (4-2*ks))
        mf32(a, DR, OP+4*ks, SP1+4*ks, ks == 0); mf32(a, DI, OP+4*ks, SP1+12+4*ks, ks == 0)
    a("L_B_sp2e:")
    cmul_pk(a, DR, DI, TC, TSN, 12, TMP)
    for i in range(6): a("v_cvt_pk_bf16_f32 v%d, v%d, v%d" % (OP+i, DR+2*i, DR+2*i+1))
    for i in range(6): a("v_cvt_pk_bf16_f32 v%d, v%d, v%d" % (OP+6+i, DI+2*i, DI+2*i+1))
    for ks in range(3):
        mf32(a, DR, CS+6+4*ks, OP+4*ks, ks == 0); mf32(a, DI, CS+4*ks, OP+4*ks, ks == 0)
    for q in range(4):
        for e in range(3): a("v_cvt_pk_bf16_f32 v%d, v%d, v%d" % (WR+4*q+e, DR+3*q+e, DI+3*q+e))
        a("buffer_store_dwordx4 %s, v6, s[24:27], s%d offen %s" % (vr(WR+4*q,4), 44+q, STMOD))
    a("L_B_p1done:")
    TS(a, 4)
    a("""
    s_lshr_b32 s32, s30, 4
    s_and_b32 s33, s30, 15
    s_lshr_b32 s34, s33, 2
    s_bfe_u32 s35, s33, 0x10001
    s_and_b32 s36, s33, 1
    s_lshl_b32 s3, s36, 3
    s_mul_i32 s4, s36, 12
    s_cmp_eq_u32 s32, 0
    s_cselect_b32 s37, 1, 0
    s_cselect_b32 s40, 13, 12
    s_cselect_b32 s38, s3, s32
    s_cselect_b32 s39, 0, s4
    s_mul_i32 s3, s35, 288
    s_add_u32 s39, s39, s3
    s_mul_i32 s3, s34, 72
    s_add_u32 s39, s39, s3
    s_lshl_b32 s43, s40, 4
    s_sub_u32 s3, 16, s38
    s_and_b32 s3, s3, 15
    s_sub_u32 s4, 529, s39
    s_sub_u32 s4, s4, s40
    s_cmp_eq_u32 s35, 0
    s_cselect_b32 s3, s38, s3
    s_cselect_b32 s4, s39, s4
    s_mul_i32 s3, s3, 578
    s_lshl_b32 s4, s4, 1
    s_add_u32 s3, s3, s4
    s_and_b32 s41, s3, 0xfffffff0
    s_and_b32 s42, s3, 15
    s_mov_b32 s54, 0
    s_cmp_lt_u32 s31, 8
    s_cbranch_scc1 L_B_adr
    s_mov_b32 s14, 1183744
    s_mov_b32 s15, 0x20000
    s_mov_b32 s18, 1183744
    s_mov_b32 s19, 0x20000
    s_cmp_lt_u32 s31, 10
    s_cselect_b32 s48, s12, s16
    s_cselect_b32 s49, s13, s17
    s_mov_b32 s50, 1183744
    s_mov_b32 s51, 0x20000
    s_and_b32 s3, s31, 1
    s_mul_i32 s3, s3, 591872
    s_add_u32 s41, s41, s3
    s_mul_i32 s4, s31, 9216
    s_add_u32 s4, s4, %d
    """ % (WL - 8*9216))
    for v in range(9):
        a("v_add_u32 v5, %d, v1" % (64*v))
        a("v_mul_u32_u24 v8, 7282, v5")
        a("v_lshrrev_b32 v8, 16, v8")
        a("v_mul_u32_u24 v8, 9104, v8")
        a("v_lshl_add_u32 v8, v5, 4, v8")
        a("s_mov_b32 m0, s4")
        a("s_add_u32 s4, s4, 1024")
        a("buffer_load_dwordx4 v8, s[48:51], s41 offen lds")
    a("""
    s_and_b32 s3, s33, 13
    s_xor_b32 s4, s31, 11
    s_or_b32 s3, s3, s4
    s_or_b32 s3, s3, s37
    s_cmp_eq_u32 s3, 0
    s_cselect_b32 s54, 1, 0
    s_cbranch_scc0 L_B_adr
    v_and_b32 v5, 1, v3
    v_lshlrev_b32 v5, 6, v5
    v_add_u32 v5, v5, v2
    v_lshlrev_b32 v5, 4, v5
    v_add_u32 v5, s38, v5
    v_sub_u32 v6, 0x800, v5
    s_cmp_eq_u32 s35, 0
    s_cselect_b64 vcc, -1, 0
    s_mov_b32 s3, 147968
    s_cselect_b32 s3, -147968, s3
    s_cselect_b32 s4, 0, 576
    v_cndmask_b32 v5, v5, v6, vcc
    v_mul_u32_u24 v5, 578, v5
    s_mov_b32 exec_hi, 0
    """)
    for rho in range(4):
        a("v_mov_b32 v%d, 0" % (16 + rho)); a("v_mov_b32 v%d, 0" % (20 + rho))
        a("buffer_load_short_d16_hi v%d, v5, s[12:15], s4 offen" % (16 + rho))
        a("buffer_load_short_d16_hi v%d, v5, s[16:19], s4 offen" % (20 + rho))
        if rho < 3: a("v_add_u32 v5, s3, v5")
    a("s_mov_b32 exec_hi, -1")
    a("""
L_B_adr:
    s_cmp_eq_u32 s37, 0
    s_movk_i32 s3, 5462
    s_cselect_b32 s3, s3, 5042
    s_mul_i32 s57, s32, 3072
    s_cselect_b32 s4, 256, 0
    s_add_u32 s57, s57, s4
    s_mul_i32 s4, s33, s43
    s_add_u32 s57, s57, s4
    s_add_u32 s57, s57, %d
    s_sub_u32 s4, %d, s43
    s_sub_u32 s5, %d, s43
    s_cmp_lt_u32 s31, 2
    s_cselect_b32 s55, s37, 0
    """ % (X_OFF, XSTRIDE, XROW))
    for v in range(3):
        a("v_add_u32 v4, %d, v0" % (768*v))
        a("v_mul_u32_u24 v5, s3, v4")
        a("v_lshrrev_b32 v5, 16, v5")
        a("v_lshlrev_b32 v4, 4, v4")
        a("v_mad_u32_u24 v%d, v5, s4, v4" % (PG+v))
        a("v_mad_u32_u24 v%d, v5, s5, v4" % (PL+v))
    a("""
    s_add_u32 s3, s37, s31
    s_cmp_ge_u32 s3, 3
    s_cselect_b32 s56, 1, 0
    s_cbranch_scc0 L_B_adr2
    """)
    for i, d in enumerate((F16, F16+4, F8, F8+4, T1C, T1S, T2C, T2S, F16B, F16B+4)): a("ds_read_b128 %s, v7 offset:%d" % (vr(d,4), 11264 + 1024*i))
    a("""
    s_lshl_b32 s3, s31, 2
    s_sub_u32 s3, 44, s3
    s_add_u32 s4, s40, 47
    s_cmp_eq_u32 s38, 0
    s_movk_i32 s5, 127
    s_cselect_b32 s5, 128, s5
    s_cmp_eq_u32 s35, 0
    s_cselect_b64 vcc, 0, -1
    s_cselect_b32 s58, 0, 0x80000000
    v_and_b32 v4, 1, v3
    v_lshl_add_u32 v4, v4, 6, v2
    """)
    for rho in range(4):
        a("v_add_u32 v5, %d, v4" % (16*rho))
        a("v_sub_u32 v6, s5, v5")
        a("v_and_b32 v6, 127, v6")
        a("v_cndmask_b32 v5, v5, v6, vcc")
        a("v_mul_u32_u24 v%d, 144, v5" % (120+rho))
    a("v_and_b32 v124, 7, v1\nv_lshl_add_u32 v124, v3, 5, v124\nv_mul_u32_u24 v124, %d, v124" % XROW)
    for pi in range(2):
        for (sel, dst) in (("v_lshrrev_b32 v5, 5, v1", "w"), ("v_bfe_u32 v5, v1, 3, 1", "o")):
            a(sel)
            a("v_add3_u32 v5, v5, s3, %d" % (2*pi))
            a("v_min_u32 v5, 38, v5")
            a("v_mul_u32_u24 v6, 21846, v5")
            a("v_lshrrev_b32 v6, 16, v6")
            if dst == "w":
                a("v_mul_u32_u24 v8, 71, v6")
                a("v_mul_u32_u24 v6, 24, v5")
                a("v_sub_u32 v6, v6, v8")
                a("v_sub_u32 v8, s4, v6")
                a("v_cndmask_b32 v6, v6, v8, vcc")
                a("v_lshl_add_u32 v6, v6, 1, s42")
                for rho in range(4): a("v_add_u32 v%d, v6, v%d" % (WA+4*pi+rho, 120+rho))
            else:
                a("v_add_u32 v6, v6, v5")
                a("v_lshl_add_u32 v%d, v6, 2, v124" % (OA+pi))
    for i in range(16): a("v_mov_b32 v%d, 0" % (WR+i))
    a("""
    s_branch L_B_b2
L_B_adr2:
    s_cmp_eq_u32 s31, 0
    s_cbranch_scc0 L_B_b2
    v_lshlrev_b32 v4, 4, v1
    v_add_u32 v5, %d, v4
    v_add_u32 v4, %d, v4
    """ % (TAB['G2S'] + 2048, TAB['TWS3'] + 3072))
    for i in range(6): a("global_load_dwordx4 %s, v4, s[6:7] offset:%d" % (vr(TC+4*i,4), 1024*i - 3072))
    a("global_load_dwordx2 v[12:13], v4, s[6:7] offset:3072")
    for i in range(6): a("global_load_dwordx4 %s, v5, s[6:7] offset:%d" % (vr(96+4*i,4), 1024*i - 2048))
    a("L_B_b2:\ns_waitcnt vmcnt(0)")
    TS(a, 5)
    a("s_barrier")
    a("""
    s_mov_b32 s3, %d
    s_mov_b32 s59, s56
    v_mov_b32 v131, s28
L_B_poll1:
    buffer_load_dwordx4 v[120:123], v88, s[24:27], s57 offen %s
    buffer_load_dwordx4 v[124:127], v89, s[24:27], s57 offen %s
    s_cmp_eq_u32 s55, 0
    s_cbranch_scc1 L_B_poll1b
    buffer_load_dwordx4 v[128:131], v90, s[24:27], s57 offen %s
L_B_poll1b:
    s_cmp_eq_u32 s59, 0
    s_cbranch_scc1 L_B_poll1c
    s_mov_b32 s59, 0
    """ % (SPIN, LDMOD, LDMOD, LDMOD))
    for pi in range(2):
        for rho in range(4):
            a("ds_read_u16_d16_hi v%d, v%d offset:%d" % (WR+8*pi+rho, WA+4*pi+rho, WL))
            a("ds_read_u16_d16_hi v%d, v%d offset:%d" % (WR+8*pi+4+rho, WA+4*pi+rho, WL+18432))
    a("""
    s_waitcnt lgkmcnt(0)
    s_cmp_eq_u32 s54, 0
    s_cbranch_scc1 L_B_nowh2
    s_mov_b32 exec_hi, 0
    """)
    for rho in range(4):
        a("v_add_f32 v%d, v%d, v%d" % (WR+rho, WR+rho, 16+rho)); a("v_sub_f32 v%d, v%d, v%d" % (WR+4+rho, WR+4+rho, 20+rho))
        a("v_mul_f32 v%d, 0.5, v%d" % (WR+rho, WR+rho)); a("v_mul_f32 v%d, 0.5, v%d" % (WR+4+rho, WR+4+rho))
    a("s_mov_b32 exec_hi, -1\nL_B_nowh2:")
    for pi in range(2):
        for rho in range(4): a("v_xor_b32 v%d, s58, v%d" % (WR+8*pi+4+rho, WR+8*pi+4+rho))
    a("""
L_B_poll1c:
    s_sub_u32 s3, s3, 1
    s_cbranch_scc1 L_B_poll1x
    s_waitcnt vmcnt(0)
    v_cmp_ne_u32 vcc, s28, v123
    v_cmp_ne_u32 s[4:5], s28, v127
    v_cmp_ne_u32 s[60:61], s28, v131
    s_or_b64 vcc, vcc, s[4:5]
    s_or_b64 vcc, vcc, s[60:61]
    s_cbranch_scc1 L_B_poll1
L_B_poll1x:
    s_waitcnt vmcnt(0)
    ds_write_b128 v91, v[120:123] offset:%d
    ds_write_b128 v92, v[124:127] offset:%d
    s_cmp_eq_u32 s55, 0
    s_cbranch_scc1 L_B_st1
    ds_write_b128 v93, v[128:131] offset:%d
L_B_st1:
    s_waitcnt lgkmcnt(0)
    """ % (XL, XL, XL))
    TS(a, 6)
    a("""
    s_barrier
    s_cmp_eq_u32 s56, 0
    s_cbranch_scc1 L_B_p2skip
    """)
    TS(a, 11)
    O = [120, 124]; R = [132, 140]; I = [136, 144]
    for pi in range(2):
        for e in range(4): a("ds_read_b32 v%d, v%d offset:%d" % (O[pi]+e, OA+pi, XL + e*8*XROW))
    def cvt(pi, neg=False):
        for e in range(4): a("v_cvt_pk_bf16_f32 v%d, v%d, %sv%d" % (O[pi]+e, R[pi]+e, "-" if neg else "", I[pi]+e))
    for pi in range(2):
        a("s_waitcnt lgkmcnt(%d)" % (4-4*pi))
        mf16(a, R[pi], O[pi], F16); mf16(a, I[pi], O[pi], F16+4)
    for pi in range(2):
        cmul_pk(a, R[pi], I[pi], T1C, T1S, 4, TMP); cvt(pi)
        mf16(a, R[pi], F8, O[pi]); mf16(a, I[pi], F8+4, O[pi])
    for pi in range(2):
        cmul_pk(a, R[pi], I[pi], WR+8*pi, WR+8*pi+4, 4, TMP); cvt(pi, True)
        mf16(a, R[pi], O[pi], F8); mf16(a, I[pi], O[pi], F8+4)
    for pi in range(2):
        cmul_pk(a, R[pi], I[pi], T2C, T2S, 4, TMP); cvt(pi)
        mf16(a, R[pi], F16B, O[pi]); mf16(a, I[pi], F16B+4, O[pi])
    for pi in range(2):
        cvt(pi)
        for e in range(4): a("ds_write_b32 v%d, v%d offset:%d" % (OA+pi, O[pi]+e, XL + e*8*XROW))
    a("s_waitcnt lgkmcnt(0)")
    TS(a, 12)
    G1 = 64; G2 = 96; LD = 120; DR3 = 136; DI3 = 152; T3 = 8; TC12 = 12; TS12 = 13
    a("L_B_p2skip:")
    a("""
L_B_b4:
    s_mul_i32 s44, s30, %d
    s_add_u32 s45, s44, 12288
    s_add_u32 s46, s44, 24576
    v_lshlrev_b32 v4, 4, v0
    s_barrier
    ds_read_b128 v[120:123], v91 offset:%d
    ds_read_b128 v[124:127], v92 offset:%d
    s_cmp_eq_u32 s55, 0
    s_cbranch_scc1 L_B_st2
    ds_read_b128 v[128:131], v93 offset:%d
    s_waitcnt lgkmcnt(0)
    buffer_store_dwordx4 v[128:131], v4, s[24:27], s46 offen %s
L_B_st2:
    s_waitcnt lgkmcnt(1)
    buffer_store_dwordx4 v[120:123], v4, s[24:27], s44 offen %s
    s_waitcnt lgkmcnt(0)
    buffer_store_dwordx4 v[124:127], v4, s[24:27], s45 offen %s
    """ % (ZSTRIDE, XL, XL, XL, STMOD, STMOD, STMOD))
    TS(a, 7)
    a("""
    s_cmp_ge_u32 s31, 9
    s_cbranch_scc1 L_end
    """)
    a("""
    v_lshlrev_b32 v6, 7, v2
    v_add_u32 v6, s30, v6
    v_cvt_f32_u32 v6, v6
    v_mul_f32 v6, %s, v6
    v_lshlrev_b32 v7, 1, v3
    v_cvt_f32_u32 v7, v7
    v_mul_f32 v7, v6, v7
    v_add_f32 v6, v6, v7
    v_cvt_f32_u32 v4, v2
    v_mul_f32 v4, 0.5, v4
    v_cos_f32 v8, v7
    v_sin_f32 v9, v7
    v_cos_f32 v4, v4
    v_cos_f32 v10, v6
    v_sin_f32 v11, v6
    v_cmp_eq_u32 vcc, 0, v3
    v_cndmask_b32 v9, v9, v4, vcc
    v_cvt_pk_bf16_f32 v62, v8, v9
    v_cvt_pk_bf16_f32 v63, v10, v11
    v_lshrrev_b32 v14, 2, v1
    v_mul_u32_u24 v14, %d, v14
    v_and_b32 v5, 3, v1
    v_lshl_add_u32 v14, v5, 4, v14
    s_lshl_b32 s3, s31, 7
    v_add_u32 v14, s3, v14
    v_mul_u32_u24 v15, 294912, v2
    v_lshl_add_u32 v15, v3, 4, v15
    s_mul_i32 s60, s30, 2304
    s_add_u32 s60, s60, s3
    s_cmp_eq_u32 s31, 8
    s_cbranch_scc1 L_B_b5
    """ % (f2u(1.0/2048), TROW))
    for rho in range(12):
        sel = "s53" if rho & 1 else "s52"; q, e = divmod(rho, 3)
        a("v_perm_b32 v%d, v%d, v%d, %s" % (G1+4*q+e, CS+12+rho//2, CS+6+rho//2, sel))
        a("v_perm_b32 v%d, v%d, v%d, %s" % (G1+16+4*q+e, CS+6+rho//2, CS+rho//2, sel))
    for q in range(4): a("v_mov_b32 v%d, 0" % (G1+4*q+3)); a("v_mov_b32 v%d, 0" % (G1+16+4*q+3))
    a("""
    v_lshrrev_b32 v7, 5, v1
    v_bfe_u32 v5, v1, 2, 1
    v_lshl_add_u32 v4, v7, 1, v5
    v_mul_u32_u24 v4, %d, v4
    v_bfe_u32 v5, v1, 3, 2
    v_and_b32 v6, 3, v1
    v_lshl_add_u32 v5, v5, 2, v6
    v_lshl_add_u32 v4, v5, 4, v4
    s_cmp_eq_u32 s31, 0
    s_cselect_b32 s3, 13, 12
    v_cmp_gt_u32 s[56:57], s3, v5
    s_lshl_b32 s3, s3, 4
    s_mul_i32 s44, s30, s3
    s_mul_i32 s3, s31, %d
    s_add_u32 s44, s44, s3
    s_add_u32 s45, s44, %d
    s_add_u32 s46, s45, %d
    s_add_u32 s47, s46, %d
    v_mov_b32 v6, %d
    v_cndmask_b32 v4, v6, v4, s[56:57]
    v_mul_u32_u24 v5, 48, v58
    v_mad_u32_u24 v5, v7, 24, v5
    s_mul_i32 s3, s31, %d
    v_add_u32 v5, s3, v5
    s_cmp_eq_u32 s31, 0
    s_cbranch_scc1 L_B_sp3e
    """ % (ZSTRIDE, 16*ZSTRIDE, 4*ZSTRIDE, 4*ZSTRIDE, 4*ZSTRIDE, BAD, 2*TROW))
    for rho in range(12):
        q, e = divmod(rho, 3)
        a("v_mov_b32 v%d, v%d" % (G2+rho, G1+4*q+e)); a("v_mov_b32 v%d, v%d" % (G2+12+rho, G1+16+4*q+e))
    a("L_B_sp3e:")
    a("s_waitcnt vmcnt(0)")
    TS(a, 8)
    a("s_mov_b32 s3, %d\nL_B_poll2:" % SPIN)
    for q in range(4): a("buffer_load_dwordx4 %s, v4, s[24:27], s%d offen %s" % (vr(LD+4*q,4), 44+q, LDMOD))
    a("""
    s_sub_u32 s3, s3, 1
    s_cbranch_scc1 L_B_poll2x
    s_waitcnt vmcnt(0)
    v_cmp_ne_u32 vcc, s28, v123
    v_cmp_ne_u32 s[4:5], s28, v127
    v_cmp_ne_u32 s[6:7], s28, v131
    v_cmp_ne_u32 s[58:59], s28, v135
    s_or_b64 vcc, vcc, s[4:5]
    s_or_b64 s[6:7], s[6:7], s[58:59]
    s_or_b64 vcc, vcc, s[6:7]
    s_and_b64 vcc, vcc, s[56:57]
    s_cbranch_scc1 L_B_poll2
L_B_poll2x:
    s_waitcnt vmcnt(0)
    """)
    TS(a, 9)
    for ks in range(4):
        mf32(a, DR3, LD+4*ks, G1+4*ks, ks == 0); mf32(a, DI3, LD+4*ks, G1+16+4*ks, ks == 0)
    cmul_pk(a, DR3, DI3, TC, TSN, 12, T3)
    a("""
    s_cmp_eq_u32 s31, 0
    s_cbranch_scc0 L_B_sp4
    v_mul_f32 v%d, v%d, v%d
    v_fma_f32 v%d, -v%d, v%d, v%d
L_B_sp4:
    """ % (DI3, DR3+12, TC12, DI3, DI3+12, TS12, DI3))
    for rho in range(12): a("v_cvt_pk_bf16_f32 v%d, v%d, v%d" % (LD+rho, DR3+rho, DI3+rho))
    for ks in range(3): mf32(a, DR3, LD+4*ks, G2+4*ks, ks == 0)
    for ks in range(3): mf32(a, DI3, LD+4*ks, G2+12+4*ks, ks == 0)
    a("s_mov_b32 exec_lo, 0xffffff\ns_mov_b32 exec_hi, 0xffffff")
    for c, D in enumerate((DR3, DI3)):
        for q in range(3):
            for i in (2*q, 2*q+1): a("v_cvt_pk_bf16_f32 v%d, v%d, v%d" % (G1+6*c+i, D+2*i, D+2*i+1))
            a("ds_write_b64 v5, %s offset:%d" % (vr(G1+6*c+2*q,2), TL + c*TROW + 8*q))
    a("""
    s_mov_b64 exec, -1
    s_waitcnt lgkmcnt(0)
L_B_b5:
    """)
    TS(a, 13)
    a("s_barrier")
    for t in range(4): a("ds_read_b64_tr_b16 %s, v14 offset:%d" % (vr(120+2*t,2), TL + 64*(t>>1) + 8*(t&1)))
    for t in range(4):
        a("s_waitcnt lgkmcnt(%d)" % (3-t))
        a("v_mfma_f32_16x16x16_bf16 %s, %s, %s, 0" % (vr(136+4*t,4), vr(120+2*t,2), vr(C1P,2)))
    for tp in range(2):
        for i in range(4): a("v_cvt_pk_bf16_f32 v%d, v%d, v%d" % (152+4*tp+i, 136+8*tp+2*i, 137+8*tp+2*i))
        a("buffer_store_dwordx4 %s, v15, s[20:23], s60 offen offset:%d" % (vr(152+4*tp,4), 1152+64*tp))
    TS(a, 10)
    a("s_branch L_end")
```

```python
import numpy as np
def bf16(x):
    u = np.float32(x).view(np.uint32) if isinstance(x, np.ndarray) else np.array(x, np.float32).view(np.uint32)
    return ((u + 0x7FFF + ((u >> 16) & 1)) >> 16).astype(np.uint32)
def pk(lo, hi): return bf16(np.asarray(lo, np.float32)) | (bf16(np.asarray(hi, np.float32)) << 16)
def f32(x): return np.asarray(x, np.float32).view(np.uint32)
L = np.arange(64)
def cs(ph):
    c = np.cos(2*np.pi*ph); s = np.sin(2*np.pi*ph)
    c[np.abs(c) < 1e-12] = 0; s[np.abs(s) < 1e-12] = 0
    return c, s
j = L % 32; h = L // 32
perm = 12*((j >> 2) & 1) + 4*(j >> 3) + (j & 3)
SCALE = 2.0/(2048*576)
def planar(kk):
    C = [cs(kk*(12*h+r)/24.0) for r in range(12)]
    Cc = [pk(C[2*i][0], C[2*i+1][0]) for i in range(6)]
    Ss = [pk(C[2*i][1], C[2*i+1][1]) for i in range(6)]
    Ns = [pk(-C[2*i][1], -C[2*i+1][1]) for i in range(6)]
    return Cc, Ss, Ns
def blocks():
    B = {}
    Cc, Ss, Ns = planar(perm)
    tw = [cs(-perm*(12*h+r)/576.0) for r in range(12)]
    B['CSTW'] = Ns + Cc + Ss + [f32(t[0]) for t in tw] + [f32(t[1]) for t in tw] + [perm.astype(np.uint32), np.zeros(64, np.uint32)]
    row8 = j >= 13; k1 = np.where(row8, j-13, j); ok = j < 26
    Cc2, _, Ns2 = planar(k1)
    m0 = (~row8 & ok); m1 = (row8 & ok)
    B['SP1'] = [c*m0 for c in Cc2] + [c*m1 for c in Cc2] + [c*m0 for c in Ns2] + [c*m1 for c in Ns2]
    tw = [cs(-k1*(12*h+r)/576.0) for r in range(12)]
    B['TWS1'] = [f32(t[0]) for t in tw] + [f32(t[1]) for t in tw]
    tw = [cs(-perm*r/576.0) for r in range(13)]
    wt = [0.5 if r in (0, 12) else 1.0 for r in range(13)]
    B['TWS3'] = [f32(tw[r][0]*wt[r]) for r in range(12)] + [f32(tw[r][1]*wt[r]) for r in range(12)]
    B['TWS3X'] = [f32(tw[12][0]*0.5), f32(tw[12][1]*0.5), np.zeros(64, np.uint32), np.zeros(64, np.uint32)]
    g2 = []
    for r in range(12):
        c, s = cs(perm*r/24.0)
        if r == 0: c, s = np.ones(64), np.where(perm % 2 == 0, 1.0, -1.0)
        g2.append(pk(c, s))
    B['G2S'] = [x*(h == 0) for x in g2] + [x*(h == 1) for x in g2]
    i16 = L % 16; g = L // 16; q8 = L % 8
    for name, sh in (('P2', 0.0), ('P2H', 0.5)):
        def inter(ph):
            v = [cs(p) for p in ph]
            return [pk(c, s) for c, s in v] + [pk(-s, c) for c, s in v]
        f16a = inter([(4*g+e)*(i16+sh)/16.0 for e in range(4)])
        f16b = inter([i16*(4*g+e+sh)/16.0 for e in range(4)])
        msk = ((i16 >> 3) == (g >> 1))
        f8 = [x*msk for x in inter([q8*(4*(g & 1)+e)/8.0 for e in range(4)])]
        t1 = [cs(-(i16+sh)*(4*(g & 1)+e)/128.0) for e in range(4)]
        t2 = [cs(-q8*(4*g+e+sh)/128.0) for e in range(4)]
        B[name] = f16a + f8 + [f32(t[0]*SCALE) for t in t1] + [f32(t[1]*SCALE) for t in t1] + [f32(t[0]) for t in t2] + [f32(t[1]) for t in t2] + f16b
    return B
def layout(extra=None):
    B = blocks()
    if extra: B.update(extra)
    off = {}; data = []
    for k, regs in B.items():
        assert len(regs) % 4 == 0, k
        off[k] = len(data)*4
        a = np.array([np.asarray(r).astype(np.uint32) for r in regs])
        a = a.reshape(-1, 4, 64).transpose(0, 2, 1).reshape(-1)
        data.extend(a.tolist())
    return off, data
def emit(data):
    out = []
    for i in range(0, len(data), 8): out.append(".long " + ",".join("0x%x" % v for v in data[i:i+8]))
    return "\n".join(out) + "\n"
if __name__ == "__main__":
    off, data = layout(); print(off, len(data)*4, len(emit(data)))
```

```python
import sys
from asmlib import Asm
import roleB, tables
NAME = "concat_heads__ssm_conv_s4d__spectral_gfnet__prompt"
def build(debug_ts=False, with_A=True):
    a = Asm()
    def TS(a, i):
        if debug_ts: a("s_memrealtime s[%d:%d]" % (64+2*i, 65+2*i))
    a("""
    s_cmp_ge_u32 s2, 224
    s_cbranch_scc1 L_exit
    s_setprio 3
    """)
    TS(a, 0)
    a("""
    s_cmp_ge_u32 s2, 128
    s_cbranch_scc1 L_A
    """)
    TAB, tdata = tables.layout()
    def prefetch(a, role):
        a("""
    s_getpc_b64 s[4:5]
L_pc%s:
    v_lshlrev_b32 v4, 4, v0
    v_lshrrev_b32 v2, 6, v0
    global_load_dword v167, v4, s[4:5]
    v_and_b32 v1, 63, v0
    v_readfirstlane_b32 s31, v2
    s_add_u32 s6, s4, L_tab-L_pc%s
    s_addc_u32 s7, s5, 0
    v_lshlrev_b32 v7, 4, v1
    v_and_b32 v2, 15, v1
    v_lshrrev_b32 v3, 4, v1
    """ % (role, role))
    roleB.gen_B(a, TS, prefetch, TAB)
    if with_A:
        import roleA
        roleA.gen_A(a, TS, prefetch, TAB)
    else:
        a("L_A:\ns_branch L_exit")
    a("L_end:")
    if debug_ts:
        a("""
    s_waitcnt vmcnt(0) lgkmcnt(0)
    s_memrealtime s[94:95]
    s_mul_i32 s3, s2, 12
    s_add_u32 s3, s3, s31
    s_lshl_b32 s3, s3, 7
    s_add_u32 s3, s3, 0x800000
    s_waitcnt lgkmcnt(0)
    s_mov_b64 exec, 1
    v_mov_b32 v4, 0
        """)
        for i in range(16):
            a("v_mov_b32 v6, s%d\nv_mov_b32 v7, s%d" % (64+2*i, 65+2*i))
            a("buffer_store_dwordx2 v[6:7], v4, s[24:27], s3 offen offset:%d" % (8*i))
    a("L_exit:\ns_endpgm")
    body = a.finalize()
    ref = open("cdna_kernels/%s.s.ref" % NAME).read()
    head = [l for l in ref.split("\n") if l.startswith(";") and "@launch" not in l and "Override" not in l and "grid=ceil" not in l]
    out = "\n".join(head) + "\n; @launch grid=(224,1,1) block=(768,1,1) lds=163840\n"
    out += '.amdgcn_target "amdgcn-amd-amdhsa--gfx950"\n.text\n.globl %s_kernel\n.p2align 8\n.type %s_kernel,@function\n%s_kernel:\n' % (NAME, NAME, NAME)
    out += body
    out += ".p2align 10\n.type L_tab,@object\nL_tab:\n" + tables.emit(tdata) + ".size L_tab, %d\n" % (4*len(tdata))
    out += """.section .rodata,"a"
.p2align 6
.amdhsa_kernel %s_kernel
  .amdhsa_next_free_vgpr 168
  .amdhsa_next_free_sgpr 102
  .amdhsa_accum_offset 168
  .amdhsa_group_segment_fixed_size 0
  .amdhsa_kernarg_size 104
  .amdhsa_user_sgpr_count 2
  .amdhsa_user_sgpr_kernarg_segment_ptr 1
  .amdhsa_system_sgpr_workgroup_id_x 1
.end_amdhsa_kernel
""" % NAME
    return out, a
if __name__ == "__main__":
    ts = "ts" in sys.argv; wa = "noA" not in sys.argv
    out, a = build(ts, wa)
    path = sys.argv[1]
    open(path, "w").write(out)
    print("wrote", path, "lines", len(a.lines), "nops inserted", a.nops)
```

```python
import sys
from asmlib import Asm
import roleB, tables
NAME = "concat_heads__ssm_conv_s4d__spectral_gfnet__prompt"
def build(debug_ts=False, with_A=True, dbg=False):
    a = Asm()
    def TS(a, i):
        if debug_ts: a("s_memrealtime s[%d:%d]" % (64+2*i, 65+2*i))
    a("""
    s_cmp_ge_u32 s2, 224
    s_cbranch_scc1 L_exit
    s_setprio 3
    """)
    TS(a, 0)
    a("""
    s_cmp_ge_u32 s2, 128
    s_cbranch_scc1 L_A
    """)
    TAB, tdata = tables.layout()
    def prefetch(a, role):
        a("""
    s_getpc_b64 s[4:5]
L_pc%s:
    v_lshlrev_b32 v4, 4, v0
    v_lshrrev_b32 v2, 6, v0
    global_load_dword v167, v4, s[4:5]
    v_and_b32 v1, 63, v0
    v_readfirstlane_b32 s31, v2
    s_add_u32 s6, s4, L_tab-L_pc%s
    s_addc_u32 s7, s5, 0
    v_lshlrev_b32 v7, 4, v1
    v_and_b32 v2, 15, v1
    v_lshrrev_b32 v3, 4, v1
    """ % (role, role))
    roleB.gen_B(a, TS, prefetch, TAB)
    if with_A:
        import roleA
        roleA.gen_A(a, TS, prefetch, TAB)
    else:
        a("L_A:\ns_branch L_exit")
    a("L_end:")
    if dbg:
        a("""
    s_cmp_eq_u32 s31, 4
    s_cbranch_scc0 L_exit
    s_waitcnt vmcnt(0) lgkmcnt(0)
    s_memrealtime s[94:95]
    s_load_dwordx2 s[8:9], s[0:1], 88
    s_mov_b32 s10, 256
    s_mov_b32 s11, 0x20000
    s_waitcnt lgkmcnt(0)
    s_mov_b64 exec, 1
    v_mov_b32 v4, 0
    s_not_b32 s3, s64
    v_mov_b32 v6, s3
    buffer_atomic_umax v6, v4, s[8:11], 0 offen sc1
    s_cmp_ge_u32 s2, 128
    s_cbranch_scc1 L_dbgA
        """)
        for j, i in enumerate((3, 4, 11, 7, 9, 10, 15)):
            a("v_mov_b32 v6, s%d\nbuffer_atomic_umax v6, v4, s[8:11], 0 offen offset:%d sc1" % (64+2*i, 4+4*j))
        a("s_branch L_exit\nL_dbgA:")
        for j, i in enumerate((0, 2, 3, 5, 7, 9, 10, 15)):
            a("v_mov_b32 v6, s%d\nbuffer_atomic_umax v6, v4, s[8:11], 0 offen offset:%d sc1" % (64+2*i, 32+4*j))
    elif debug_ts:
        a("""
    s_waitcnt vmcnt(0) lgkmcnt(0)
    s_memrealtime s[94:95]
    s_mul_i32 s3, s2, 12
    s_add_u32 s3, s3, s31
    s_lshl_b32 s3, s3, 7
    s_add_u32 s3, s3, 0x800000
    s_waitcnt lgkmcnt(0)
    s_mov_b64 exec, 1
    v_mov_b32 v4, 0
        """)
        for i in range(16):
            a("v_mov_b32 v6, s%d\nv_mov_b32 v7, s%d" % (64+2*i, 65+2*i))
            a("buffer_store_dwordx2 v[6:7], v4, s[24:27], s3 offen offset:%d" % (8*i))
    a("L_exit:\ns_endpgm")
    body = a.finalize()
    ref = open("cdna_kernels/%s.s.ref" % NAME).read()
    head = [l for l in ref.split("\n") if l.startswith(";") and "@launch" not in l and "Override" not in l and "grid=ceil" not in l]
    out = "\n".join(head) + "\n; @launch grid=(224,1,1) block=(768,1,1) lds=163840\n"
    out += '.amdgcn_target "amdgcn-amd-amdhsa--gfx950"\n.text\n.globl %s_kernel\n.p2align 8\n.type %s_kernel,@function\n%s_kernel:\n' % (NAME, NAME, NAME)
    out += body
    out += ".p2align 10\n.type L_tab,@object\nL_tab:\n" + tables.emit(tdata) + ".size L_tab, %d\n" % (4*len(tdata))
    out += """.section .rodata,"a"
.p2align 6
.amdhsa_kernel %s_kernel
  .amdhsa_next_free_vgpr 168
  .amdhsa_next_free_sgpr 102
  .amdhsa_accum_offset 168
  .amdhsa_group_segment_fixed_size 0
  .amdhsa_kernarg_size 104
  .amdhsa_user_sgpr_count 2
  .amdhsa_user_sgpr_kernarg_segment_ptr 1
  .amdhsa_system_sgpr_workgroup_id_x 1
.end_amdhsa_kernel
""" % NAME
    return out, a
if __name__ == "__main__":
    ts = "ts" in sys.argv; wa = "noA" not in sys.argv
    out, a = build(ts or "dbg" in sys.argv, wa, "dbg" in sys.argv)
    path = sys.argv[1]
    open(path, "w").write(out)
    print("wrote", path, "lines", len(a.lines), "nops inserted", a.nops)
```

```python
import struct, os
def f2u(x): return "0x%08x" % struct.unpack("<I", struct.pack("<f", x))[0]
X_OFF = 0x400000; XSTRIDE = 24832; ZSTRIDE = 26624; BAD = 0x40000000
TL = 0; TROW = 1168; WL = 18688; XL = WL + 36864; XROW = 208; CL = XL + 26624
SPIN = 1 << 20
OPT = dict(x.split("=") for x in os.environ.get("BOPT","").split(",") if x)
LDMOD = OPT.get("ld","sc1").replace("+"," "); STMOD = OPT.get("st","sc1").replace("+"," ")

def vr(a, n): return "v[%d:%d]" % (a, a + n - 1)

def chain(a, arg, step, n, emit):
    for i in range(n):
        emit(i)
        if i + 1 < n: a("v_add_f32 v%d, v%d, v%d" % (arg, arg, step))

def cmul_pk(a, re, im, tc, ts, n, t0):
    for p in range(0, n, 4):
        ps = [q for q in (p, p+2) if q < n]
        for q in ps: a("v_pk_mul_f32 %s, %s, %s" % (vr(t0+(q&2),2), vr(re+q,2), vr(ts+q,2)))
        for q in ps: a("v_pk_mul_f32 %s, %s, %s" % (vr(re+q,2), vr(re+q,2), vr(tc+q,2)))
        for q in ps: a("v_pk_fma_f32 %s, %s, %s, %s neg_lo:[1,0,0] neg_hi:[1,0,0]" % (vr(re+q,2), vr(im+q,2), vr(ts+q,2), vr(re+q,2)))
        for q in ps: a("v_pk_fma_f32 %s, %s, %s, %s" % (vr(im+q,2), vr(im+q,2), vr(tc+q,2), vr(t0+(q&2),2)))

def mf32(a, d, A, B, first): a("v_mfma_f32_32x32x16_bf16 %s, %s, %s, %s" % (vr(d,16), vr(A,4), vr(B,4), "0" if first else vr(d,16)))
def mf16(a, d, A, B, first=True): a("v_mfma_f32_16x16x32_bf16 %s, %s, %s, %s" % (vr(d,4), vr(A,4), vr(B,4), "0" if first else vr(d,4)))

def gen_B(a, TS, prefetch, TAB):
    CS = 16; TC = 34; TSN = 46; PJ = 58; C1 = 60; C1P = 62
    F16 = 64; F8 = 72; T1C = 80; T1S = 84; T2C = 112; T2S = 116; WR = 96; F16B = 148
    PG = 88; PL = 91; OA = 94; WA = 156; WV = 24
    SP1 = 64
    XD = 112; OP = 120; DR = 132; DI = 148; TMP = 164

    def uni():
        a("""
    s_lshr_b32 s32, s30, 4
    s_and_b32 s33, s30, 15
    s_lshr_b32 s34, s33, 2
    s_bfe_u32 s35, s33, 0x10001
    s_and_b32 s36, s33, 1
    s_lshl_b32 s3, s36, 3
    s_mul_i32 s4, s36, 12
    s_cmp_eq_u32 s32, 0
    s_cselect_b32 s37, 1, 0
    s_cselect_b32 s40, 13, 12
    s_cselect_b32 s38, s3, s32
    s_cselect_b32 s39, 0, s4
    s_mul_i32 s3, s35, 288
    s_add_u32 s39, s39, s3
    s_mul_i32 s3, s34, 72
    s_add_u32 s39, s39, s3
    s_lshl_b32 s43, s40, 4
    s_sub_u32 s3, 16, s38
    s_and_b32 s3, s3, 15
    s_sub_u32 s4, 529, s39
    s_sub_u32 s4, s4, s40
    s_cmp_eq_u32 s35, 0
    s_cselect_b32 s3, s38, s3
    s_cselect_b32 s4, s39, s4
    s_mul_i32 s62, s3, 578
    s_lshl_b32 s4, s4, 1
    s_add_u32 s3, s62, s4
    s_and_b32 s41, s3, 0xfffffff0
    s_and_b32 s42, s3, 15
    s_mov_b32 s54, 0
        """)

    def hop1adr(skip):
        a("""
    s_cmp_eq_u32 s37, 0
    s_movk_i32 s3, 5462
    s_cselect_b32 s3, s3, 5042
    s_mul_i32 s57, s32, 3072
    s_cselect_b32 s4, 256, 0
    s_add_u32 s57, s57, s4
    s_mul_i32 s4, s33, s43
    s_add_u32 s57, s57, s4
    s_add_u32 s57, s57, %d
    s_sub_u32 s4, %d, s43
    s_sub_u32 s5, %d, s43
    s_cmp_lt_u32 s31, 2
    s_cselect_b32 s55, s37, 0
        """ % (X_OFF, XSTRIDE, XROW))
        for v in range(3):
            a("v_add_u32 v4, %d, v0" % (768*v))
            a("v_mul_u32_u24 v5, s3, v4")
            a("v_lshrrev_b32 v5, 16, v5")
            a("v_lshlrev_b32 v4, 4, v4")
            a("v_mad_u32_u24 v%d, v5, s4, v4" % (PG+v))
            a("v_mad_u32_u24 v%d, v5, s5, v4" % (PL+v))
        a("""
    s_add_u32 s3, s37, s31
    s_cmp_ge_u32 s3, 3
    s_cselect_b32 s56, 1, 0
    s_cbranch_scc0 %s
    s_lshl_b32 s3, s31, 2
    s_sub_u32 s3, 44, s3
    s_add_u32 s4, s40, 47
    s_cmp_eq_u32 s38, 0
    s_movk_i32 s5, 127
    s_cselect_b32 s5, 128, s5
    s_cmp_eq_u32 s35, 0
    s_cselect_b64 vcc, 0, -1
    s_cselect_b32 s58, 0, 0x80000000
    v_lshrrev_b32 v4, 1, v3
    v_lshl_add_u32 v4, v4, 6, v2
        """ % skip)
        for rho in range(4):
            a("v_add_u32 v5, %d, v4" % (16*rho))
            a("v_sub_u32 v6, s5, v5")
            a("v_and_b32 v6, 127, v6")
            a("v_cndmask_b32 v5, v5, v6, vcc")
            a("v_mul_u32_u24 v%d, 144, v5" % (120+rho))
        a("v_bfe_u32 v124, v1, 3, 1\nv_and_b32 v5, 3, v1\nv_lshl_add_u32 v124, v124, 2, v5\nv_lshl_add_u32 v124, v3, 5, v124\nv_mul_u32_u24 v124, %d, v124" % XROW)
        for pi in range(2):
            for (sel, dst) in (("v_and_b32 v5, 1, v3", "w"), ("v_bfe_u32 v5, v1, 2, 1", "o")):
                a(sel)
                a("v_add3_u32 v5, v5, s3, %d" % (2*pi))
                a("v_min_u32 v5, 38, v5")
                a("v_mul_u32_u24 v6, 21846, v5")
                a("v_lshrrev_b32 v6, 16, v6")
                if dst == "w":
                    a("v_mul_u32_u24 v9, 71, v6")
                    a("v_mul_u32_u24 v6, 24, v5")
                    a("v_sub_u32 v6, v6, v9")
                    a("v_sub_u32 v9, s4, v6")
                    a("v_cndmask_b32 v6, v6, v9, vcc")
                    a("v_lshl_add_u32 v6, v6, 1, s42")
                    for rho in range(4): a("v_add_u32 v%d, v6, v%d" % (WA+4*pi+rho, 120+rho))
                else:
                    a("v_add_u32 v6, v6, v5")
                    a("v_lshl_add_u32 v%d, v6, 2, v124" % (OA+pi))

    a("""
L_B:
    s_load_dwordx8 s[8:15], s[0:1], 56
    s_load_dwordx2 s[24:25], s[0:1], 96
    """)
    prefetch(a, "B")
    a("""
    s_cmp_ge_u32 s31, 4
    s_cbranch_scc1 L_B_pfe
    s_mul_i32 s3, s31, 3072
    s_add_u32 s29, s3, %d
    s_mov_b32 m0, s29
    s_add_u32 s3, s3, %d
    v_add_u32 v4, s3, v7
    s_lshr_b32 s3, s2, 3
    global_load_lds_dwordx4 v4, s[6:7]
    global_load_lds_dwordx4 v4, s[6:7] offset:1024
    s_cmp_eq_u32 s31, 3
    s_cbranch_scc1 L_B_pf
    global_load_lds_dwordx4 v4, s[6:7] offset:2048
    s_branch L_B_pfe
L_B_pf:
    s_lshl_b32 s3, s3, 11
    v_lshl_add_u32 v4, v1, 5, s3
    global_load_dword v167, v4, s[4:5]
L_B_pfe:
    s_and_b32 s30, s2, 7
    s_lshl_b32 s30, s30, 4
    s_lshr_b32 s3, s2, 3
    s_add_u32 s30, s30, s3
    s_mov_b32 s22, 4718592
    s_mov_b32 s23, 0x20000
    s_mov_b32 s26, 0x1000000
    s_mov_b32 s27, 0x20000
    s_cmp_ge_u32 s31, 9
    s_cbranch_scc1 L_B_help
    s_mul_i32 s44, s30, 1152
    s_lshl_b32 s3, s31, 7
    s_add_u32 s44, s44, s3
    s_add_u32 s45, s44, 147456
    s_add_u32 s46, s44, 294912
    s_add_u32 s47, s44, 442368
    v_mul_u32_u24 v4, 589824, v3
    v_lshl_add_u32 v4, v2, 3, v4
    s_waitcnt lgkmcnt(0)
    s_mov_b32 s10, 2359296
    s_mov_b32 s11, 0x20000
    s_mov_b64 s[20:21], s[14:15]
    buffer_load_dwordx2 v[112:113], v4, s[8:11], s44 offen
    buffer_load_dwordx2 v[114:115], v4, s[8:11], s45 offen
    buffer_load_dwordx2 v[116:117], v4, s[8:11], s46 offen
    buffer_load_dwordx2 v[118:119], v4, s[8:11], s47 offen
    s_barrier
    s_load_dword s28, s[24:25], 12
    s_setprio 0
    """ % (CL, TAB['CSTW']))
    TS(a, 1)
    a("""
    v_lshrrev_b32 v4, 1, v2
    v_and_b32 v5, 1, v2
    v_lshlrev_b32 v6, 9, v3
    v_add_u32 v6, s30, v6
    v_mul_u32_u24 v6, v6, v4
    v_lshl_add_u32 v6, v5, 9, v6
    v_lshlrev_b32 v8, 7, v4
    v_cmp_eq_u32 vcc, 1, v2
    v_mov_b32 v124, 0x400
    s_mov_b32 s3, %s
    v_cndmask_b32 v6, v6, 0, vcc
    v_cndmask_b32 v8, v8, v124, vcc
    v_cvt_f32_u32 v6, v6
    v_cvt_f32_u32 v8, v8
    v_mul_f32 v6, s3, v6
    v_mul_f32 v8, s3, v8
    """ % f2u(1.0/2048))
    chain(a, 6, 8, 4, lambda i: a("v_cos_f32 v%d, v6" % (120+i)))
    a("""
    s_mov_b32 s52, 0x05040100
    s_mov_b32 s53, 0x07060302
    v_cvt_pk_bf16_f32 v60, v120, v121
    v_cvt_pk_bf16_f32 v61, v122, v123
    v_mul_u32_u24 v4, %d, v2
    v_lshl_add_u32 v4, v3, 5, v4
    s_lshl_b32 s3, s31, 7
    v_add_u32 v4, s3, v4
    v_bfe_u32 v5, v1, 4, 1
    v_bfe_u32 v8, v1, 1, 1
    v_lshl_add_u32 v5, v5, 1, v8
    v_min_u32 v5, 2, v5
    v_lshlrev_b32 v5, 3, v5
    v_and_b32 v8, 1, v1
    v_mad_u32_u24 v5, v8, 24, v5
    v_bfe_u32 v8, v1, 2, 2
    v_mad_u32_u24 v5, v8, 48, v5
    v_lshrrev_b32 v9, 5, v1
    v_mul_u32_u24 v8, 576, v9
    s_mul_i32 s3, s31, %d
    v_add3_u32 v5, v5, v8, s3
    s_mul_i32 s44, s30, %d
    s_mul_i32 s3, s31, 3072
    s_add_u32 s44, s44, s3
    s_add_u32 s44, s44, %d
    s_cmp_eq_u32 s31, 0
    s_cselect_b32 s3, 0, 256
    s_add_u32 s44, s44, s3
    s_cmp_eq_u32 s31, 0
    s_movk_i32 s3, 768
    s_cselect_b32 s3, 832, s3
    s_add_u32 s45, s44, s3
    s_add_u32 s46, s45, s3
    s_add_u32 s47, s46, s3
    v_add_u32 v7, %d, v7
    v_mov_b32 v6, %d
    v_and_b32 v8, 31, v1
    """ % (TROW, 2*TROW, XSTRIDE, X_OFF, CL, BAD))
    uni()
    a("s_waitcnt vmcnt(4)")
    TS(a, 14)
    a("""
    s_barrier
    s_cmp_eq_u32 s31, 8
    s_cbranch_scc1 L_B_c24e
    """)
    for i in range(4): a("ds_read_b128 %s, v7 offset:%d" % (vr(CS+4*i,4), 1024*i))
    a("s_cmp_eq_u32 s31, 0\ns_cbranch_scc1 L_B_sp1")
    a("ds_read_b128 %s, v7 offset:%d" % (vr(CS+40,4), 10240))
    for i in range(4, 10): a("ds_read_b128 %s, v7 offset:%d" % (vr(CS+4*i,4), 1024*i))
    a("""
    v_cmp_gt_u32 vcc, 24, v8
    s_waitcnt lgkmcnt(6)
    v_mad_u32_u24 v8, v9, 24, v58
    s_branch L_B_sp1e
L_B_sp1:
    ds_read_b64 v[32:33], v7 offset:4096
    ds_read_b32 v58, v7 offset:10248
    v_cmp_lt_u32 vcc, 12, v8
    v_subrev_u32 v10, 13, v8
    v_cndmask_b32 v10, v8, v10, vcc
    v_cndmask_b32 v11, 0, -1, vcc
    v_and_b32 v12, 12, v10
    v_add_u32 v12, v12, v10
    v_cmp_lt_u32 vcc, 11, v10
    v_cndmask_b32 v12, v12, 4, vcc
    v_lshl_add_u32 v12, v9, 5, v12
    v_lshlrev_b32 v12, 4, v12
    v_add_u32 v12, %d, v12
    ds_read_b128 v[120:123], v12
    ds_read_b128 v[124:127], v12 offset:1024
    ds_read_b128 v[128:131], v12 offset:2048
    ds_read_b64 v[34:35], v12 offset:4104
    """ % CL)
    for i in range(5, 10): a("ds_read_b128 %s, v12 offset:%d" % (vr(CS+4*i,4), 1024*i))
    a("ds_read_b64 v[56:57], v12 offset:10240\ns_waitcnt lgkmcnt(7)")
    for i in range(6):
        a("v_bfi_b32 v%d, v11, 0, v%d" % (SP1+i, 126+i)); a("v_and_b32 v%d, v11, v%d" % (SP1+6+i, 126+i))
        a("v_bfi_b32 v%d, v11, 0, v%d" % (SP1+12+i, 120+i)); a("v_and_b32 v%d, v11, v%d" % (SP1+18+i, 120+i))
    a("""
    v_cmp_gt_u32 vcc, 26, v8
    v_mad_u32_u24 v8, v9, 26, v8
L_B_sp1e:
    v_lshlrev_b32 v8, 4, v8
    v_cndmask_b32 v6, v6, v8, vcc
L_B_c24e:
    s_waitcnt lgkmcnt(0)
    s_add_u32 s28, s28, 1
    s_and_b32 s28, s28, 0xbfffbfff
    """)
    for q in range(4): a("v_mov_b32 v%d, s28" % (WR + 4*q + 3))
    TS(a, 2)
    a("s_waitcnt vmcnt(0)")
    TS(a, 3)
    for t in range(4):
        sel = "s53" if t & 1 else "s52"; o = t >> 1
        a("v_perm_b32 v%d, v%d, v%d, %s" % (OP+2*t, XD+2+o, XD+o, sel))
        a("v_perm_b32 v%d, v%d, v%d, %s" % (OP+2*t+1, XD+6+o, XD+4+o, sel))
    for t in range(4):
        a("v_mfma_f32_16x16x16_bf16 %s, %s, %s, 0" % (vr(DR+4*t,4), vr(OP+2*t,2), vr(C1,2)))
    for rho in range(4): a("v_cvt_pk_bf16_f32 v%d, v%d, v%d" % (DI+2*rho, DR+rho, DR+4+rho))
    for rho in range(4):
        a("v_cvt_pk_bf16_f32 v%d, v%d, v%d" % (DI+2*rho+1, DR+8+rho, DR+12+rho))
        if rho & 1: a("ds_write_b128 v4, %s offset:%d" % (vr(DI+4*(rho>>1),4), TL+16*(rho>>1)))
    a("""
    s_waitcnt lgkmcnt(0)
    s_barrier
    s_cmp_eq_u32 s31, 8
    s_cbranch_scc1 L_B_p1done
    """)
    for c in range(2):
        for al in range(3):
            a("ds_read_b64_tr_b16 %s, v5 offset:%d" % (vr(OP+6*c+2*al,2), TL + c*TROW + al*192))
    a("s_cmp_eq_u32 s31, 0\ns_cbranch_scc1 L_B_sp2")
    for ks in range(3):
        a("s_waitcnt lgkmcnt(%d)" % (4-2*ks))
        mf32(a, DR, OP+4*ks, CS+6+4*ks, ks == 0); mf32(a, DI, OP+4*ks, CS+4*ks, ks == 0)
    a("s_branch L_B_sp2e\nL_B_sp2:")
    for ks in range(3):
        a("s_waitcnt lgkmcnt(%d)" % (4-2*ks))
        mf32(a, DR, OP+4*ks, SP1+4*ks, ks == 0); mf32(a, DI, OP+4*ks, SP1+12+4*ks, ks == 0)
    a("L_B_sp2e:")
    cmul_pk(a, DR, DI, TC, TSN, 12, TMP)
    for i in range(6): a("v_cvt_pk_bf16_f32 v%d, v%d, v%d" % (OP+i, DR+2*i, DR+2*i+1))
    for i in range(6): a("v_cvt_pk_bf16_f32 v%d, v%d, v%d" % (OP+6+i, DI+2*i, DI+2*i+1))
    for ks in range(3):
        mf32(a, DR, CS+6+4*ks, OP+4*ks, ks == 0); mf32(a, DI, CS+4*ks, OP+4*ks, ks == 0)
    for q in range(4):
        for e in range(3): a("v_cvt_pk_bf16_f32 v%d, v%d, v%d" % (WR+4*q+e, DR+3*q+e, DI+3*q+e))
        a("buffer_store_dwordx4 %s, v6, s[24:27], s%d offen %s" % (vr(WR+4*q,4), 44+q, STMOD))
    a("L_B_p1done:")
    TS(a, 4)
    hop1adr("L_B_adr2")
    a("s_branch L_B_u3")
    a("L_B_help:")
    uni()
    a("""
    s_cmp_eq_u32 s37, 0
    s_cselect_b32 s3, s36, s35
    s_lshl_b32 s3, s3, 4
    s_lshl_b32 s4, s34, 5
    s_add_u32 s3, s3, s4
    s_mul_i32 s3, s3, 9248
    s_add_u32 s3, s3, s62
    v_subrev_u32 v4, 576, v0
    v_cmp_lt_u32 vcc, 95, v4
    v_subrev_u32 v5, 96, v4
    v_cndmask_b32 v4, v4, v5, vcc
    v_mul_u32_u24 v5, 10923, v4
    v_lshrrev_b32 v5, 16, v5
    v_mul_u32_u24 v6, 6, v5
    v_sub_u32 v6, v4, v6
    v_mul_u32_u24 v5, 9248, v5
    v_add_u32 v5, s3, v5
    v_and_b32 v5, 0xffffff80, v5
    v_lshl_add_u32 v8, v6, 7, v5
    v_mov_b32 v9, %d
    v_cndmask_b32 v10, v8, v9, vcc
    v_cndmask_b32 v11, v9, v8, vcc
    s_sub_u32 s3, s31, 9
    s_mul_i32 s3, s3, 3072
    s_add_u32 s4, s3, %d
    s_mov_b32 m0, s4
    s_and_b32 s4, s30, 0x71
    s_cmp_eq_u32 s4, 1
    s_mov_b32 s4, %d
    s_cselect_b32 s4, %d, s4
    s_add_u32 s3, s3, s4
    v_add_u32 v4, s3, v7
    s_waitcnt lgkmcnt(0)
    s_mov_b64 s[20:21], s[14:15]
    s_mov_b64 s[16:17], s[12:13]
    s_mov_b64 s[12:13], s[10:11]
    s_mov_b32 s14, 1183744
    s_mov_b32 s15, 0x20000
    s_mov_b32 s18, 1183744
    s_mov_b32 s19, 0x20000
    s_barrier
    buffer_load_dword v165, v10, s[12:15], 0 offen
    buffer_load_dword v166, v11, s[16:19], 0 offen
    s_load_dword s28, s[24:25], 12
    s_barrier
    global_load_lds_dwordx4 v4, s[6:7]
    global_load_lds_dwordx4 v4, s[6:7] offset:1024
    global_load_lds_dwordx4 v4, s[6:7] offset:2048
    global_load_lds_dwordx4 v4, s[6:7] offset:3072
    s_setprio 0
    v_add_u32 v7, %d, v7
    s_cmp_lt_u32 s31, 11
    s_cselect_b32 s48, s12, s16
    s_cselect_b32 s49, s13, s17
    s_mov_b32 s50, 1183744
    s_mov_b32 s51, 0x20000
    s_cmp_lt_u32 s31, 10
    s_cselect_b32 s44, s12, s16
    s_cselect_b32 s45, s13, s17
    s_mov_b32 s46, 1183744
    s_mov_b32 s47, 0x20000
    s_sub_u32 s3, s31, 9
    s_mul_i32 s63, s3, 12288
    s_add_u32 s63, s63, %d
    s_mul_i32 s3, s3, 768
    s_sub_u32 s4, s3, 1152
    s_cmp_lt_u32 s31, 11
    s_cselect_b32 s5, s3, s4
    s_cmp_lt_u32 s31, 10
    s_cselect_b32 s3, s3, s4
    """ % (BAD, CL + 11264, TAB['P2'], TAB['P2H'], CL, WL))
    for v in range(12):
        a("v_add_u32 v5, %s, v1" % ("s5" if v < 6 else "s3"))
        a("v_add_u32 v5, %d, v5" % (64*v))
        a("v_mul_u32_u24 v6, 7282, v5")
        a("v_lshrrev_b32 v6, 16, v6")
        a("v_mul_u32_u24 v6, 9104, v6")
        a("v_lshl_add_u32 v%d, v5, 4, v6" % (WV+v))
    a("""
    s_waitcnt lgkmcnt(0)
    s_add_u32 s28, s28, 1
    s_and_b32 s28, s28, 0xbfffbfff
    """)
    TS(a, 2)
    a("s_waitcnt vmcnt(0)\ns_setprio 3")
    TS(a, 3)
    a("s_barrier")
    for v in range(12):
        a("s_mov_b32 m0, s63")
        a("s_add_u32 s63, s63, 1024")
        a("buffer_load_dwordx4 v%d, %s, s41 offen lds" % (WV+v, "s[48:51]" if v < 6 else "s[44:47]"))
    a("""
    s_setprio 0
    s_and_b32 s3, s33, 13
    s_xor_b32 s4, s31, 11
    s_or_b32 s3, s3, s4
    s_or_b32 s3, s3, s37
    s_cmp_eq_u32 s3, 0
    s_cselect_b32 s54, 1, 0
    s_cbranch_scc0 L_B_wh
    v_lshrrev_b32 v5, 1, v3
    v_lshlrev_b32 v5, 6, v5
    v_add_u32 v5, v5, v2
    v_lshlrev_b32 v5, 4, v5
    v_add_u32 v5, s38, v5
    v_sub_u32 v6, 0x800, v5
    s_cmp_eq_u32 s35, 0
    s_cselect_b64 vcc, -1, 0
    s_mov_b32 s3, 147968
    s_cselect_b32 s3, -147968, s3
    s_cselect_b32 s4, 0, 576
    v_cndmask_b32 v5, v5, v6, vcc
    v_mul_u32_u24 v5, 578, v5
    s_mov_b32 exec_lo, 0xffff
    s_mov_b32 exec_hi, 0xffff
    """)
    for rho in range(4):
        a("v_mov_b32 v%d, 0" % (16 + rho)); a("v_mov_b32 v%d, 0" % (20 + rho))
        a("buffer_load_short_d16_hi v%d, v5, s[12:15], s4 offen" % (16 + rho))
        a("buffer_load_short_d16_hi v%d, v5, s[16:19], s4 offen" % (20 + rho))
        if rho < 3: a("v_add_u32 v5, s3, v5")
    a("s_mov_b64 exec, -1\nL_B_wh:")
    TS(a, 4)
    hop1adr("L_end")
    a("L_B_u3:")
    for i, d in enumerate((F16, F16+4, F8, F8+4, T1C, T1S, T2C, T2S, F16B, F16B+4)): a("ds_read_b128 %s, v7 offset:%d" % (vr(d,4), 11264 + 1024*i))
    for i in range(16): a("v_mov_b32 v%d, 0" % (WR+i))
    a("L_B_adr2:\ns_waitcnt vmcnt(0)")
    TS(a, 5)
    a("""
    s_barrier
    s_mov_b32 s3, %d
    s_mov_b32 s59, s56
    v_mov_b32 v131, s28
L_B_poll1:
    buffer_load_dwordx4 v[120:123], v88, s[24:27], s57 offen %s
    buffer_load_dwordx4 v[124:127], v89, s[24:27], s57 offen %s
    s_cmp_eq_u32 s55, 0
    s_cbranch_scc1 L_B_poll1b
    buffer_load_dwordx4 v[128:131], v90, s[24:27], s57 offen %s
L_B_poll1b:
    s_cmp_eq_u32 s59, 0
    s_cbranch_scc1 L_B_poll1c
    s_mov_b32 s59, 0
    """ % (SPIN, LDMOD, LDMOD, LDMOD))
    for pi in range(2):
        for rho in range(4):
            a("ds_read_u16_d16_hi v%d, v%d offset:%d" % (WR+8*pi+rho, WA+4*pi+rho, WL))
            a("ds_read_u16_d16_hi v%d, v%d offset:%d" % (WR+8*pi+4+rho, WA+4*pi+rho, WL+18432))
    a("""
    s_waitcnt lgkmcnt(0)
    s_cmp_eq_u32 s54, 0
    s_cbranch_scc1 L_B_nowh2
    s_mov_b32 exec_lo, 0xffff
    s_mov_b32 exec_hi, 0xffff
    """)
    for rho in range(4):
        a("v_add_f32 v%d, v%d, v%d" % (WR+rho, WR+rho, 16+rho)); a("v_sub_f32 v%d, v%d, v%d" % (WR+4+rho, WR+4+rho, 20+rho))
        a("v_mul_f32 v%d, 0.5, v%d" % (WR+rho, WR+rho)); a("v_mul_f32 v%d, 0.5, v%d" % (WR+4+rho, WR+4+rho))
    a("s_mov_b64 exec, -1\nL_B_nowh2:")
    for pi in range(2):
        for rho in range(4): a("v_xor_b32 v%d, s58, v%d" % (WR+8*pi+4+rho, WR+8*pi+4+rho))
    a("""
L_B_poll1c:
    s_sub_u32 s3, s3, 1
    s_cbranch_scc1 L_B_poll1x
    s_waitcnt vmcnt(0)
    v_cmp_ne_u32 vcc, s28, v123
    v_cmp_ne_u32 s[4:5], s28, v127
    v_cmp_ne_u32 s[6:7], s28, v131
    s_or_b64 vcc, vcc, s[4:5]
    s_or_b64 vcc, vcc, s[6:7]
    s_cbranch_scc1 L_B_poll1
L_B_poll1x:
    s_waitcnt vmcnt(0)
    ds_write_b128 v91, v[120:123] offset:%d
    ds_write_b128 v92, v[124:127] offset:%d
    s_cmp_eq_u32 s55, 0
    s_cbranch_scc1 L_B_st1
    ds_write_b128 v93, v[128:131] offset:%d
L_B_st1:
    s_waitcnt lgkmcnt(0)
    """ % (XL, XL, XL))
    TS(a, 6)
    a("""
    s_barrier
    s_cmp_eq_u32 s56, 0
    s_cbranch_scc1 L_B_p2skip
    """)
    TS(a, 11)
    O = [120, 124]; R = [132, 140]; I = [136, 144]
    for pi in range(2):
        for e in range(4): a("ds_read_b32 v%d, v%d offset:%d" % (O[pi]+e, OA+pi, XL + e*8*XROW))
    def cvt(pi, neg=False):
        for e in range(4): a("v_cvt_pk_bf16_f32 v%d, v%d, %sv%d" % (O[pi]+e, R[pi]+e, "-" if neg else "", I[pi]+e))
    for pi in range(2):
        a("s_waitcnt lgkmcnt(%d)" % (4-4*pi))
        mf16(a, R[pi], O[pi], F16); mf16(a, I[pi], O[pi], F16+4)
    for pi in range(2):
        cmul_pk(a, R[pi], I[pi], T1C, T1S, 4, TMP); cvt(pi)
        mf16(a, R[pi], F8, O[pi]); mf16(a, I[pi], F8+4, O[pi])
    for pi in range(2):
        cmul_pk(a, R[pi], I[pi], WR+8*pi, WR+8*pi+4, 4, TMP); cvt(pi, True)
        mf16(a, R[pi], O[pi], F8); mf16(a, I[pi], O[pi], F8+4)
    for pi in range(2):
        cmul_pk(a, R[pi], I[pi], T2C, T2S, 4, TMP); cvt(pi)
        mf16(a, R[pi], F16B, O[pi]); mf16(a, I[pi], F16B+4, O[pi])
    for pi in range(2):
        cvt(pi)
        for e in range(4): a("ds_write_b32 v%d, v%d offset:%d" % (OA+pi, O[pi]+e, XL + e*8*XROW))
    a("s_waitcnt lgkmcnt(0)")
    TS(a, 12)
    G1 = 64; G2 = 96; LD = 120; DR3 = 136; DI3 = 152; T3 = 8; TC12 = 12; TS12 = 13
    a("""
L_B_p2skip:
    s_mul_i32 s44, s30, %d
    s_add_u32 s45, s44, 12288
    s_add_u32 s46, s44, 24576
    v_lshlrev_b32 v4, 4, v0
    s_barrier
    ds_read_b128 v[120:123], v91 offset:%d
    ds_read_b128 v[124:127], v92 offset:%d
    s_cmp_eq_u32 s55, 0
    s_cbranch_scc1 L_B_st2
    ds_read_b128 v[128:131], v93 offset:%d
    s_waitcnt lgkmcnt(0)
    buffer_store_dwordx4 v[128:131], v4, s[24:27], s46 offen %s
L_B_st2:
    s_waitcnt lgkmcnt(1)
    buffer_store_dwordx4 v[120:123], v4, s[24:27], s44 offen %s
    s_waitcnt lgkmcnt(0)
    buffer_store_dwordx4 v[124:127], v4, s[24:27], s45 offen %s
    """ % (ZSTRIDE, XL, XL, XL, STMOD, STMOD, STMOD))
    TS(a, 7)
    a("""
    s_cmp_ge_u32 s31, 9
    s_cbranch_scc1 L_end
    s_cmp_eq_u32 s31, 0
    s_cbranch_scc0 L_B_h2
    v_and_b32 v4, 31, v1
    v_lshlrev_b32 v4, 4, v4
    v_add_u32 v4, %d, v4
    ds_read_b64 v[136:137], v4 offset:1032
    ds_read_b128 v[138:141], v4 offset:2048
    ds_read_b128 v[142:145], v4 offset:3072
    ds_read_b64 v[146:147], v4 offset:4096
    ds_read_b64 v[34:35], v4 offset:4104
    """ % CL)
    for i in range(5, 10): a("ds_read_b128 %s, v4 offset:%d" % (vr(CS+4*i,4), 1024*i))
    a("""
    ds_read_b64 v[56:57], v4 offset:10240
    ds_read_b32 v12, v4 offset:%d
    ds_read_b32 v13, v4 offset:%d
L_B_h2:
    """ % (512 + 4104, 512 + 7168 + 8))
    a("""
    v_lshlrev_b32 v6, 7, v2
    v_add_u32 v6, s30, v6
    v_cvt_f32_u32 v6, v6
    v_mul_f32 v6, %s, v6
    v_lshlrev_b32 v7, 1, v3
    v_cvt_f32_u32 v7, v7
    v_mul_f32 v7, v6, v7
    v_add_f32 v6, v6, v7
    v_cvt_f32_u32 v4, v2
    v_mul_f32 v4, 0.5, v4
    v_cos_f32 v8, v7
    v_sin_f32 v9, v7
    v_cos_f32 v4, v4
    v_cos_f32 v10, v6
    v_sin_f32 v11, v6
    v_cmp_eq_u32 vcc, 0, v3
    v_cndmask_b32 v9, v9, v4, vcc
    v_cvt_pk_bf16_f32 v62, v8, v9
    v_cvt_pk_bf16_f32 v63, v10, v11
    v_lshrrev_b32 v14, 2, v1
    v_mul_u32_u24 v14, %d, v14
    v_and_b32 v5, 3, v1
    v_lshl_add_u32 v14, v5, 4, v14
    s_lshl_b32 s3, s31, 7
    v_add_u32 v14, s3, v14
    v_mul_u32_u24 v15, 294912, v2
    v_lshl_add_u32 v15, v3, 4, v15
    s_mul_i32 s60, s30, 2304
    s_add_u32 s60, s60, s3
    s_cmp_eq_u32 s31, 8
    s_cbranch_scc1 L_B_b5
    """ % (f2u(1.0/2048), TROW))
    for rho in range(12):
        sel = "s53" if rho & 1 else "s52"; q, e = divmod(rho, 3)
        a("v_perm_b32 v%d, v%d, v%d, %s" % (G1+4*q+e, CS+12+rho//2, CS+6+rho//2, sel))
        a("v_perm_b32 v%d, v%d, v%d, %s" % (G1+16+4*q+e, CS+6+rho//2, CS+rho//2, sel))
    for q in range(4): a("v_mov_b32 v%d, 0" % (G1+4*q+3)); a("v_mov_b32 v%d, 0" % (G1+16+4*q+3))
    a("""
    v_lshrrev_b32 v7, 5, v1
    v_bfe_u32 v5, v1, 2, 1
    v_lshl_add_u32 v4, v7, 1, v5
    v_mul_u32_u24 v4, %d, v4
    v_bfe_u32 v5, v1, 3, 2
    v_and_b32 v6, 3, v1
    v_lshl_add_u32 v5, v5, 2, v6
    v_lshl_add_u32 v4, v5, 4, v4
    s_cmp_eq_u32 s31, 0
    s_cselect_b32 s3, 13, 12
    v_cmp_gt_u32 s[56:57], s3, v5
    s_lshl_b32 s3, s3, 4
    s_mul_i32 s44, s30, s3
    s_mul_i32 s3, s31, %d
    s_add_u32 s44, s44, s3
    s_add_u32 s45, s44, %d
    s_add_u32 s46, s45, %d
    s_add_u32 s47, s46, %d
    v_mov_b32 v6, %d
    v_cndmask_b32 v4, v6, v4, s[56:57]
    v_mul_u32_u24 v5, 48, v58
    v_mad_u32_u24 v5, v7, 24, v5
    s_mul_i32 s3, s31, %d
    v_add_u32 v5, s3, v5
    s_cmp_eq_u32 s31, 0
    s_cbranch_scc1 L_B_sp3
    """ % (ZSTRIDE, 16*ZSTRIDE, 4*ZSTRIDE, 4*ZSTRIDE, 4*ZSTRIDE, BAD, 2*TROW))
    for rho in range(12):
        q, e = divmod(rho, 3)
        a("v_mov_b32 v%d, v%d" % (G2+rho, G1+4*q+e)); a("v_mov_b32 v%d, v%d" % (G2+12+rho, G1+16+4*q+e))
    a("""
    s_branch L_B_sp3e
L_B_sp3:
    v_sub_u32 v7, 0, v7
    v_lshlrev_b32 v8, 31, v58
    v_or_b32 v8, 0x3f803f80, v8
    s_waitcnt lgkmcnt(0)
    """)
    for r_ in (TC, TSN, TC12, TS12): a("v_mul_f32 v%d, 0.5, v%d" % (r_, r_))
    for rho in range(12):
        if rho: a("v_perm_b32 v8, v%d, v%d, %s" % (142+rho//2, 136+rho//2, "s53" if rho & 1 else "s52"))
        a("v_bfi_b32 v%d, v7, 0, v8" % (G2+rho)); a("v_and_b32 v%d, v7, v8" % (G2+12+rho))
    a("L_B_sp3e:")
    a("s_waitcnt vmcnt(0)")
    TS(a, 8)
    a("s_mov_b32 s3, %d\nL_B_poll2:" % SPIN)
    for q in range(4): a("buffer_load_dwordx4 %s, v4, s[24:27], s%d offen %s" % (vr(LD+4*q,4), 44+q, LDMOD))
    a("""
    s_sub_u32 s3, s3, 1
    s_cbranch_scc1 L_B_poll2x
    s_waitcnt vmcnt(0)
    v_cmp_ne_u32 vcc, s28, v123
    v_cmp_ne_u32 s[4:5], s28, v127
    v_cmp_ne_u32 s[6:7], s28, v131
    v_cmp_ne_u32 s[58:59], s28, v135
    s_or_b64 vcc, vcc, s[4:5]
    s_or_b64 s[6:7], s[6:7], s[58:59]
    s_or_b64 vcc, vcc, s[6:7]
    s_and_b64 vcc, vcc, s[56:57]
    s_cbranch_scc1 L_B_poll2
L_B_poll2x:
    s_waitcnt vmcnt(0)
    """)
    TS(a, 9)
    for ks in range(4):
        mf32(a, DR3, LD+4*ks, G1+4*ks, ks == 0); mf32(a, DI3, LD+4*ks, G1+16+4*ks, ks == 0)
    cmul_pk(a, DR3, DI3, TC, TSN, 12, T3)
    a("""
    s_cmp_eq_u32 s31, 0
    s_cbranch_scc0 L_B_sp4
    v_mul_f32 v%d, v%d, v%d
    v_fma_f32 v%d, -v%d, v%d, v%d
L_B_sp4:
    """ % (DI3, DR3+12, TC12, DI3, DI3+12, TS12, DI3))
    for rho in range(12): a("v_cvt_pk_bf16_f32 v%d, v%d, v%d" % (LD+rho, DR3+rho, DI3+rho))
    for ks in range(3): mf32(a, DR3, LD+4*ks, G2+4*ks, ks == 0)
    for ks in range(3): mf32(a, DI3, LD+4*ks, G2+12+4*ks, ks == 0)
    a("s_mov_b32 exec_lo, 0xffffff\ns_mov_b32 exec_hi, 0xffffff")
    for c, D in enumerate((DR3, DI3)):
        for q in range(3):
            for i in (2*q, 2*q+1): a("v_cvt_pk_bf16_f32 v%d, v%d, v%d" % (G1+6*c+i, D+2*i, D+2*i+1))
            a("ds_write_b64 v5, %s offset:%d" % (vr(G1+6*c+2*q,2), TL + c*TROW + 8*q))
    a("""
    s_mov_b64 exec, -1
    s_waitcnt lgkmcnt(0)
L_B_b5:
    """)
    TS(a, 13)
    a("s_barrier")
    for t in range(4): a("ds_read_b64_tr_b16 %s, v14 offset:%d" % (vr(120+2*t,2), TL + 64*(t>>1) + 8*(t&1)))
    for t in range(4):
        a("s_waitcnt lgkmcnt(%d)" % (3-t))
        a("v_mfma_f32_16x16x16_bf16 %s, %s, %s, 0" % (vr(136+4*t,4), vr(120+2*t,2), vr(C1P,2)))
    for tp in range(2):
        for i in range(4): a("v_cvt_pk_bf16_f32 v%d, v%d, v%d" % (152+4*tp+i, 136+8*tp+2*i, 137+8*tp+2*i))
        a("buffer_store_dwordx4 %s, v15, s[20:23], s60 offen offset:%d" % (vr(152+4*tp,4), 1152+64*tp))
    TS(a, 10)
    a("s_branch L_end")
```

```python
import numpy as np
def bf16(x):
    u = np.float32(x).view(np.uint32) if isinstance(x, np.ndarray) else np.array(x, np.float32).view(np.uint32)
    return ((u + 0x7FFF + ((u >> 16) & 1)) >> 16).astype(np.uint32)
def pk(lo, hi): return bf16(np.asarray(lo, np.float32)) | (bf16(np.asarray(hi, np.float32)) << 16)
def f32(x): return np.asarray(x, np.float32).view(np.uint32)
L = np.arange(64)
def cs(ph):
    c = np.cos(2*np.pi*ph); s = np.sin(2*np.pi*ph)
    c[np.abs(c) < 1e-12] = 0; s[np.abs(s) < 1e-12] = 0
    return c, s
j = L % 32; h = L // 32
perm = 12*((j >> 2) & 1) + 4*(j >> 3) + (j & 3)
SCALE = 2.0/(2048*576)
def planar(kk):
    C = [cs(kk*(12*h+r)/24.0) for r in range(12)]
    Cc = [pk(C[2*i][0], C[2*i+1][0]) for i in range(6)]
    Ss = [pk(C[2*i][1], C[2*i+1][1]) for i in range(6)]
    Ns = [pk(-C[2*i][1], -C[2*i+1][1]) for i in range(6)]
    return Cc, Ss, Ns
def blocks():
    B = {}
    Cc, Ss, Ns = planar(perm)
    tw = [cs(-perm*(12*h+r)/576.0) for r in range(12)]
    B['CSTW'] = Ns + Cc + Ss + [f32(t[0]) for t in tw] + [f32(t[1]) for t in tw] + [perm.astype(np.uint32), np.zeros(64, np.uint32)]
    i16 = L % 16; g = L // 16; q8 = 4*(i16 >> 3) + (i16 & 3)
    for name, sh in (('P2', 0.0), ('P2H', 0.5)):
        def inter(ph):
            v = [cs(p) for p in ph]
            return [pk(c, s) for c, s in v] + [pk(-s, c) for c, s in v]
        f16a = inter([(4*g+e)*(i16+sh)/16.0 for e in range(4)])
        f16b = inter([i16*(4*g+e+sh)/16.0 for e in range(4)])
        msk = (((i16 >> 2) & 1) == (g & 1))
        f8 = [x*msk for x in inter([q8*(4*(g >> 1)+e)/8.0 for e in range(4)])]
        t1 = [cs(-(i16+sh)*(4*(g >> 1)+e)/128.0) for e in range(4)]
        t2 = [cs(-q8*(4*g+e+sh)/128.0) for e in range(4)]
        B[name] = f16a + f8 + [f32(t[0]*SCALE) for t in t1] + [f32(t[1]*SCALE) for t in t1] + [f32(t[0]) for t in t2] + [f32(t[1]) for t in t2] + f16b
    return {k: B[k] for k in ('P2','P2H','CSTW')}
def layout(extra=None):
    B = blocks()
    if extra: B.update(extra)
    off = {}; data = []
    for k, regs in B.items():
        assert len(regs) % 4 == 0, k
        off[k] = len(data)*4
        a = np.array([np.asarray(r).astype(np.uint32) for r in regs])
        a = a.reshape(-1, 4, 64).transpose(0, 2, 1).reshape(-1)
        data.extend(a.tolist())
    return off, data
def emit(data):
    out = []
    for i in range(0, len(data), 8): out.append(".long " + ",".join("0x%x" % v for v in data[i:i+8]))
    return "\n".join(out) + "\n"
if __name__ == "__main__":
    off, data = layout(); print(off, len(data)*4, len(emit(data)))
```

```python
import sys
from asmlib import Asm
import roleB, tables
NAME = "concat_heads__ssm_conv_s4d__spectral_gfnet__prompt"
def build(debug_ts=False, with_A=True, dbg=False, amp=None):
    a = Asm()
    def TS(a, i):
        if debug_ts: a("s_memrealtime s[%d:%d]" % (64+2*i, 65+2*i))
    a("""
    s_cmp_ge_u32 s2, 224
    s_cbranch_scc1 L_exit
    s_setprio 3
    """)
    TS(a, 0)
    a("""
    s_cmp_ge_u32 s2, 128
    s_cbranch_scc1 L_A
    """)
    TAB, tdata = tables.layout()
    def prefetch(a, role):
        a("""
    s_getpc_b64 s[4:5]
L_pc%s:
    v_lshrrev_b32 v2, 6, v0
    v_and_b32 v1, 63, v0
    v_readfirstlane_b32 s31, v2
    %s
    v_lshlrev_b32 v7, 4, v1
    v_and_b32 v2, 15, v1
    v_lshrrev_b32 v3, 4, v1
    """ % (role, "s_add_u32 s6, s4, L_tab-L_pcB\n    s_addc_u32 s7, s5, 0" if role == "B" else ""))
    roleB.gen_B(a, TS, prefetch, TAB)
    a(".TABLE")
    if with_A:
        import roleA
        roleA.gen_A(a, TS, prefetch, TAB)
    else:
        a("L_A:\ns_branch L_exit")
    a("L_end:")
    if amp:
        wg, wv, st = amp
        a("""
    s_cmp_eq_u32 s31, %d
    s_cbranch_scc0 L_exit
    s_cmp_eq_u32 s2, %d
    s_cbranch_scc0 L_exit
    s_waitcnt vmcnt(0) lgkmcnt(0)
    s_memrealtime s[94:95]
    s_waitcnt lgkmcnt(0)
    s_sub_u32 s3, s%d, s64
    s_min_u32 s3, s3, 5000
    s_mul_i32 s3, s3, 10
L_amp:
    s_memrealtime s[4:5]
    s_waitcnt lgkmcnt(0)
    s_sub_u32 s4, s4, s64
    s_cmp_lt_u32 s4, s3
    s_cbranch_scc1 L_amp
        """ % (wv, wg, 64+2*st))
    elif dbg:
        a("""
    s_cmp_eq_u32 s31, 4
    s_cbranch_scc0 L_exit
    s_waitcnt vmcnt(0) lgkmcnt(0)
    s_memrealtime s[94:95]
    s_load_dwordx2 s[8:9], s[0:1], 88
    s_mov_b32 s10, 256
    s_mov_b32 s11, 0x20000
    s_waitcnt lgkmcnt(0)
    s_mov_b64 exec, 1
    v_mov_b32 v4, 0
    s_not_b32 s3, s64
    v_mov_b32 v6, s3
    buffer_atomic_umax v6, v4, s[8:11], 0 offen sc1
    s_cmp_ge_u32 s2, 128
    s_cbranch_scc1 L_dbgA
        """)
        for j, i in enumerate((3, 4, 11, 7, 9, 10, 15)):
            a("v_mov_b32 v6, s%d\nbuffer_atomic_umax v6, v4, s[8:11], 0 offen offset:%d sc1" % (64+2*i, 4+4*j))
        a("s_branch L_exit\nL_dbgA:")
        for j, i in enumerate((0, 2, 3, 5, 7, 9, 10, 15)):
            a("v_mov_b32 v6, s%d\nbuffer_atomic_umax v6, v4, s[8:11], 0 offen offset:%d sc1" % (64+2*i, 32+4*j))
    elif debug_ts:
        a("""
    s_waitcnt vmcnt(0) lgkmcnt(0)
    s_memrealtime s[94:95]
    s_mul_i32 s3, s2, 12
    s_add_u32 s3, s3, s31
    s_lshl_b32 s3, s3, 7
    s_add_u32 s3, s3, 0x800000
    s_waitcnt lgkmcnt(0)
    s_mov_b64 exec, 1
    v_mov_b32 v4, 0
        """)
        for i in range(16):
            a("v_mov_b32 v6, s%d\nv_mov_b32 v7, s%d" % (64+2*i, 65+2*i))
            a("buffer_store_dwordx2 v[6:7], v4, s[24:27], s3 offen offset:%d" % (8*i))
    a("L_exit:\ns_endpgm")
    body = a.finalize()
    ref = open("cdna_kernels/%s.s.ref" % NAME).read()
    head = [l for l in ref.split("\n") if l.startswith(";") and "@launch" not in l and "Override" not in l and "grid=ceil" not in l]
    out = "\n".join(head) + "\n; @launch grid=(224,1,1) block=(768,1,1) lds=163840\n"
    out += '.amdgcn_target "amdgcn-amd-amdhsa--gfx950"\n.text\n.globl %s_kernel\n.p2align 8\n.type %s_kernel,@function\n%s_kernel:\n' % (NAME, NAME, NAME)
    out += body.replace("    .TABLE\n", ".p2align 7\n.type L_tab,@object\nL_tab:\n" + tables.emit(tdata) + ".size L_tab, %d\n" % (4*len(tdata)))
    out += ".fill 2048, 4, 0xbf810000\n"
    out += """.section .rodata,"a"
.p2align 6
.amdhsa_kernel %s_kernel
  .amdhsa_next_free_vgpr 168
  .amdhsa_next_free_sgpr 102
  .amdhsa_accum_offset 168
  .amdhsa_group_segment_fixed_size 0
  .amdhsa_kernarg_size 104
  .amdhsa_user_sgpr_count 2
  .amdhsa_user_sgpr_kernarg_segment_ptr 1
  .amdhsa_system_sgpr_workgroup_id_x 1
.end_amdhsa_kernel
""" % NAME
    return out, a
if __name__ == "__main__":
    ts = "ts" in sys.argv; wa = "noA" not in sys.argv
    amp = [tuple(int(y) for y in x[4:].split(",")) for x in sys.argv if x.startswith("amp=")]
    out, a = build(ts or "dbg" in sys.argv or bool(amp), wa, "dbg" in sys.argv, amp[0] if amp else None)
    path = sys.argv[1]
    open(path, "w").write(out)
    print("wrote", path, "lines", len(a.lines), "nops inserted", a.nops)
```
